```python
import torch

def _softmax(x, axis=-1):
    return torch.softmax(x, dim=axis)
def _gelu(x):
    return torch.nn.functional.gelu(x, approximate="tanh")
def _silu(x):
    return torch.nn.functional.silu(x)
def _sigmoid(x):
    return torch.sigmoid(x)
def _layernorm(x, axis=-1, eps=1e-5):
    m = x.mean(dim=axis, keepdim=True)
    v = x.var(dim=axis, keepdim=True, unbiased=False)
    return (x - m) / torch.sqrt(v + eps)
def _scatter_add(tgt, idx, src, axis=0):
    return tgt.clone().index_add_(axis, idx, src)
def _segment_sum(src, seg, n):
    out = torch.zeros((n,) + src.shape[1:], dtype=src.dtype)
    return out.index_add_(0, seg, src)
def _pad(x, pw):
    flat = tuple(v for pair in reversed(pw) for v in pair)
    return torch.nn.functional.pad(x, flat)

kernel_name = 'parallel_sum__linear_kernel_hedgehog__dense_activation_squared_relu__prompt'

def setup_inputs():

    _w = (lambda a: (lambda t: t.to(torch.bfloat16) if t.is_floating_point() else t)(torch.as_tensor(a)))
    def _A_setup():
        B, S, D, H = 1, 2048, 1024, 32
        Dh = D // H
        return {
            "x": _w((lambda *s: torch.randn(*s, dtype=torch.bfloat16) * 0.05)(B, S, D)),
            "wqkv": _w((lambda *s: torch.randn(*s, dtype=torch.bfloat16) * 0.8)(D, 3 * D)),
            "w_phi": _w((lambda *s: torch.randn(*s, dtype=torch.bfloat16) * 0.8)(H, Dh, Dh) * (Dh ** -0.5)),
            "wo": _w((lambda *s: torch.randn(*s, dtype=torch.bfloat16) * 0.2)(D, D)),
        }
    _A_in = _A_setup()

    def _B_setup():
        B, S, D, F = 1, 2048, 1024, 3584
        return {
            "x": _w((lambda *s: torch.randn(*s, dtype=torch.bfloat16) * 0.05)(B, S, D)),
            "w1": _w((lambda *s: torch.randn(*s, dtype=torch.bfloat16) * 0.05)(D, F)),
            "b1": _w((lambda *s: torch.randn(*s, dtype=torch.bfloat16) * 1.6)(F)),
            "w2": _w((lambda *s: torch.randn(*s, dtype=torch.bfloat16) * 0.05)(F, D)),
            "b2": _w((lambda *s: torch.randn(*s, dtype=torch.bfloat16) * 12.8)(D)),
        }
    _B_in = _B_setup()

    return {
        "A_x": _A_in["x"],
        "A_wqkv": _A_in["wqkv"],
        "A_w_phi": _A_in["w_phi"],
        "A_wo": _A_in["wo"],
        "B_x": _B_in["x"],
        "B_w1": _B_in["w1"],
        "B_b1": _B_in["b1"],
        "B_w2": _B_in["w2"],
        "B_b2": _B_in["b2"],
    }

def reference(A_x, A_wqkv, A_w_phi, A_wo, B_x, B_w1, B_b1, B_w2, B_b2):
    def _A_ref(x, wqkv, w_phi, wo):
        B, S, D = x.shape
        H = 32; Dh = D // H
        qkv = (lambda x, *d: x.permute(*d))((x @ wqkv).reshape(B, S, 3, H, Dh), 2, 0, 3, 1, 4)
        q, k, v = qkv[0], qkv[1], qkv[2]
        pq = torch.einsum("bhsd,hdf->bhsf", q, w_phi)
        pk = torch.einsum("bhsd,hdf->bhsf", k, w_phi)
        phi_q = torch.concatenate([_softmax(pq, axis=-1), _softmax(-pq, axis=-1)], axis=-1)
        phi_k = torch.concatenate([_softmax(pk, axis=-1), _softmax(-pk, axis=-1)], axis=-1)
        kv = torch.einsum("bhsf,bhsd->bhfd", phi_k, v)
        z  = torch.einsum("bhsf->bhf", phi_k)
        num = torch.einsum("bhqf,bhfd->bhqd", phi_q, kv)
        den = torch.einsum("bhqf,bhf->bhq", phi_q, z)[..., None] + 1e-6
        o = num / den
        return (lambda x, *d: x.permute(*d))(o, 0, 2, 1, 3).reshape(B, S, D) @ wo

    def _B_ref(x, w1, b1, w2, b2):
        h = torch.einsum("bsd,df->bsf", x, w1) + b1
        zero = torch.zeros_like(h)
        r = torch.where(h > zero, h, zero)
        h = r * r
        out = torch.einsum("bsf,fd->bsd", h, w2) + b2
        return out

    x = A_x
    xn = _layernorm(x, axis=-1)
    return x + _A_ref(xn, A_wqkv, A_w_phi, A_wo) + _B_ref(xn, B_w1, B_b1, B_w2, B_b2)
```

```python
import re

def _regs(tok):
    tok = tok.strip()
    tok = tok.lstrip('-')
    m = re.fullmatch(r'abs\((.*)\)', tok)
    if m: tok = m.group(1)
    m = re.fullmatch(r'\|(.*)\|', tok)
    if m: tok = m.group(1)
    m = re.fullmatch(r'([vsa])(\d+)', tok)
    if m: return [(m.group(1), int(m.group(2)))]
    m = re.fullmatch(r'([vsa])\[(\d+):(\d+)\]', tok)
    if m: return [(m.group(1), i) for i in range(int(m.group(2)), int(m.group(3)) + 1)]
    if tok == 'vcc': return [('s', 106), ('s', 107)]
    if tok == 'vcc_lo': return [('s', 106)]
    if tok == 'vcc_hi': return [('s', 107)]
    if tok == 'exec': return [('s', 126), ('s', 127)]
    if tok == 'm0': return [('s', 124)]
    return []

TRANS = ('v_exp_f32', 'v_log_f32', 'v_rcp_f32', 'v_rsq_f32', 'v_sqrt_f32', 'v_sin_f32', 'v_cos_f32', 'v_rcp_iflag_f32')

class Ins:
    __slots__ = ('text', 'op', 'kind', 'dst', 'src', 'srcC', 'srcAB', 'passes', 'ws', 'dpp', 'wide', 'lds')
    def __init__(self, text):
        self.text = text
        t = text.split(';')[0].strip()
        self.op = t.split()[0] if t else ''
        rest = t[len(self.op):].strip()
        ops = [o.strip() for o in rest.split(',')] if rest else []
        mods = []
        if ops:
            parts = ops[-1].split()
            if parts:
                ops[-1] = parts[0]; mods = parts[1:]
        op = self.op
        self.dst = []; self.src = []; self.srcC = []; self.srcAB = []; self.passes = 0
        self.ws = 1; self.dpp = False; self.wide = False; self.lds = False
        R = lambda i: _regs(ops[i]) if i < len(ops) else []
        allsrc = lambda a: [r for o in ops[a:] for r in _regs(o)]
        if op.endswith(':') or op.startswith('.') or op == '':
            self.kind = 'label'; self.ws = 0
        elif op == 's_nop':
            self.kind = 'nop'; self.ws = int(ops[0], 0) + 1
        elif op.startswith('v_mfma'):
            self.kind = 'mfma'; self.dst = R(0); self.srcAB = R(1) + R(2); self.srcC = R(3); self.src = self.srcAB + self.srcC
            self.passes = 8 if '32x32' in op else 4
        elif op.startswith('v_permlane'):
            self.kind = 'perm'; self.dst = R(0) + R(1); self.src = R(0) + R(1)
        elif op.startswith('v_cmp'):
            self.kind = 'valu'; self.dst = R(0); self.src = allsrc(1)
        elif op.startswith('v_readfirstlane') or op.startswith('v_readlane'):
            self.kind = 'rdlane'; self.dst = R(0); self.src = allsrc(1)
        elif op.startswith('v_'):
            self.kind = 'trans' if op.replace('_e32', '').replace('_e64', '') in TRANS else 'valu'
            self.dst = R(0); self.src = allsrc(1)
            if op.startswith('v_fmac') or op.startswith('v_dot2c') or op.startswith('v_pk_fmac'): self.src += R(0)
            if op.startswith('v_add_co') or op.startswith('v_addc_co') or op.startswith('v_sub_co'):
                self.dst = R(0) + R(1); self.src = allsrc(2)
            if op.startswith('v_cndmask') and len(ops) == 3: self.src += _regs('vcc')
            if any(m.startswith(('row_', 'quad_perm')) for m in mods) or 'quad_perm' in t or 'row_' in t: self.dpp = True
        elif op.startswith('ds_read') or op.startswith('ds_bpermute') or op.startswith('ds_swizzle'):
            self.kind = 'ds'; self.dst = R(0); self.src = allsrc(1)
        elif op.startswith('ds_'):
            self.kind = 'ds'; self.src = allsrc(0)
        elif op.startswith('buffer_load') or op.startswith('global_load'):
            self.kind = 'vmem'
            if 'lds' in mods or '_lds_' in op:
                self.lds = True; self.src = allsrc(0)
            else:
                self.dst = R(0); self.src = allsrc(1)
        elif op.startswith('buffer_store') or op.startswith('global_store') or op.startswith('buffer_atomic') or op.startswith('global_atomic'):
            self.kind = 'vmem'; self.src = allsrc(0)
            if 'x4' in op or 'x3' in op:
                self.wide = R(0) if op.startswith('buffer') else R(1)
        elif op.startswith('buffer_'):
            self.kind = 'vmem'
        elif op.startswith('s_'):
            self.kind = 'salu'
            if op.startswith(('s_cmp', 's_cbranch', 's_branch', 's_waitcnt', 's_barrier', 's_endpgm', 's_sleep', 's_setprio', 's_setpc')):
                self.src = allsrc(0)
            else:
                self.dst = R(0); self.src = allsrc(1)
        else:
            raise ValueError("unknown instr: " + text)

def required_gap(p, c):
    need = 0
    pd = set(p.dst); cs = set(c.src); cd = set(c.dst)
    pv = p.kind in ('valu', 'trans', 'perm', 'rdlane')
    cvalu = c.kind in ('valu', 'trans', 'perm', 'rdlane')
    if pv:
        vd = {r for r in pd if r[0] in 'va'}; sd = {r for r in pd if r[0] == 's'}
        if c.kind == 'mfma' and vd & cs: need = max(need, 2)
        if c.kind == 'perm' and vd & cs: need = max(need, 2)
        if c.dpp and vd & cs: need = max(need, 2)
        if c.kind == 'rdlane' and vd & cs: need = max(need, 1)
        if p.kind == 'trans' and cvalu and c.kind != 'trans' and vd & cs: need = max(need, 1)
        if p.kind == 'trans' and c.kind in ('ds', 'vmem') and vd & cs: need = max(need, 1)
        if sd & cs:
            if c.kind == 'vmem': need = max(need, 5)
            elif c.kind == 'rdlane': need = max(need, 4)
            elif cvalu or c.kind == 'mfma': need = max(need, 2)
            elif c.kind == 'salu': need = max(need, 2)
    if p.kind == 'mfma':
        n = p.passes
        tab_ab = {4: 8, 8: 12}[n]; tab_c = {4: 6, 8: 10}[n]; war = {4: 3, 8: 7}[n]
        if c.kind == 'mfma':
            if pd & set(c.srcAB): need = max(need, tab_ab)
            if pd & set(c.srcC) and not (c.srcC == p.dst and c.passes == n): need = max(need, tab_c)
            if pd & cd and not (c.srcC == p.dst): need = max(need, tab_c)
        elif cvalu or c.kind in ('ds', 'vmem'):
            if pd & (cs | cd): need = max(need, tab_ab)
        if cvalu and set(p.srcC) & cd: need = max(need, war)
    if p.kind == 'salu' and ('s', 124) in pd and c.lds: need = max(need, 1)
    if p.kind == 'vmem' and p.wide and (set(p.wide) & cd) and c.kind != 'label': need = max(need, 2)
    return need

def fix_hazards(lines, report=None):
    out = []
    for ln in lines:
        c = Ins(ln)
        if c.kind != 'label':
            dist = 0; need = 0
            for p in reversed(out):
                if dist >= 13: break
                if p.kind != 'label':
                    g = required_gap(p, c)
                    if g > dist: need = max(need, g - dist)
                dist += p.ws
            while need > 0:
                k = min(need, 16)
                out.append(Ins("  s_nop %d" % (k - 1))); need -= k
                if report is not None: report.append(ln)
        out.append(c)
    return [i.text for i in out]

class Asm:
    def __init__(self): self.l = []
    def __call__(self, s):
        for ln in s.split('\n'):
            if ln.strip(): self.l.append('  ' + ln.strip() if not ln.strip().endswith(':') else ln.strip())
    def label(self, n): self.l.append(n + ':')
    def lines(self): return self.l

def vr(a, n=1): return 'v%d' % a if n == 1 else 'v[%d:%d]' % (a, a + n - 1)
def sr(a, n=1): return 's%d' % a if n == 1 else 's[%d:%d]' % (a, a + n - 1)

def kernel_text(name, body_lines, vgpr, sgpr, align=True):
    t = ['.globl %s' % name, '.p2align 8', '.type %s,@function' % name, name + ':'] + body_lines
    return t

def kd_text(name, vgpr, sgpr):
    acc = (vgpr + 3) // 4 * 4
    return ['.p2align 6', '.amdhsa_kernel %s' % name,
            '  .amdhsa_next_free_vgpr %d' % vgpr, '  .amdhsa_next_free_sgpr %d' % sgpr,
            '  .amdhsa_accum_offset %d' % acc, '  .amdhsa_group_segment_fixed_size 0',
            '  .amdhsa_kernarg_size 96', '  .amdhsa_user_sgpr_count 2',
            '  .amdhsa_user_sgpr_kernarg_segment_ptr 1', '  .amdhsa_system_sgpr_workgroup_id_x 1',
            '.end_amdhsa_kernel']
```

```python
import sys
from asmlib import *

XN_OFF = 0
A2_OFF = 4 << 20
KVP_OFF = 24 << 20
FLAG_OFF = 28 << 20
WS_RANGE = 32 << 20
LOG2E = 0x3fb8aa3b

def srd(a, base_lo, base_hi, nrec):
    return f"""s_mov_b32 s{a}, {base_lo}
s_mov_b32 s{a+1}, {base_hi}
s_mov_b32 s{a+2}, {nrec}
s_mov_b32 s{a+3}, 0x20000"""

def gen_k0():
    a = Asm()
    a("""
    s_cmp_ge_u32 s2, 256
    s_cbranch_scc1 L0_end
    s_load_dwordx2 s[4:5], s[0:1], 0
    s_load_dwordx2 s[6:7], s[0:1], 88
    v_and_b32 v1, 63, v0              ; lane
    v_lshrrev_b32 v2, 6, v0           ; wave
    v_bfe_u32 v3, v1, 4, 1            ; r
    v_and_b32 v4, 15, v1              ; j
    v_lshrrev_b32 v5, 5, v1           ; hi
    s_lshl_b32 s3, s2, 3
    v_lshl_add_u32 v6, v2, 1, v3
    v_add_u32 v6, s3, v6              ; m
    v_lshrrev_b32 v7, 1, v4           ; j>>1
    v_and_b32 v60, 1, v4              ; j&1
    v_lshlrev_b32 v61, 2, v7
    v_lshl_add_u32 v61, v5, 1, v61
    v_add_u32 v61, v61, v60           ; piece
    v_lshlrev_b32 v61, 4, v61
    v_lshl_add_u32 v61, v6, 11, v61   ; voff_in
    v_lshl_add_u32 v62, v60, 1, v5    ; g
    v_lshlrev_b32 v62, 4, v62
    v_and_b32 v63, 15, v6
    v_add_u32 v62, v62, v63
    v_lshlrev_b32 v62, 4, v62         ; (g*16 + m&15)*16
    v_lshl_add_u32 v62, v7, 11, v62   ; + (j>>1)*2048
    v_bfe_u32 v63, v6, 4, 1
    v_lshl_add_u32 v62, v63, 10, v62  ; + mb*1024
    v_lshrrev_b32 v63, 5, v6
    v_lshl_add_u32 v62, v63, 16, v62  ; + m32blk*65536
    s_waitcnt lgkmcnt(0)
    """)
    a(srd(8, 's4', 's5', 4 << 20))
    a(srd(12, 's6', 's7', WS_RANGE))
    for i in range(4):
        a(f"buffer_load_dwordx4 v[{8+4*i}:{11+4*i}], v61, s[8:11], 0 offen offset:{512*i}")
    a(f"""
    s_cmp_lg_u32 s2, 0
    s_cbranch_scc1 L0_noflag
    v_mov_b32 v56, 0
    v_mov_b32 v57, 0
    v_mov_b32 v58, 0
    v_mov_b32 v59, 0
    v_lshlrev_b32 v2, 4, v0
    s_mov_b32 s16, {FLAG_OFF}
    buffer_store_dwordx4 v[56:59], v2, s[12:15], s16 offen
    L0_noflag:
    s_mov_b32 s17, 0xffff0000
    s_mov_b32 s18, 16384
    s_mov_b32 s19, 32768
    s_mov_b32 s20, 49152
    s_waitcnt vmcnt(0)
    """)
    F = 24
    for k in range(16):
        a(f"v_lshlrev_b32 v{F+2*k}, 16, v{8+k}")
        a(f"v_and_b32 v{F+2*k+1}, s17, v{8+k}")
    def tree(src):
        for k in range(8):
            a(f"v_pk_add_f32 v[{8+2*k}:{9+2*k}], v[{src+4*k}:{src+4*k+1}], v[{src+4*k+2}:{src+4*k+3}]")
        n = 8
        while n > 1:
            for k in range(n // 2):
                a(f"v_pk_add_f32 v[{8+2*k}:{9+2*k}], v[{8+4*k}:{9+4*k}], v[{8+4*k+2}:{8+4*k+3}]")
            n //= 2
        a("v_add_f32 v56, v8, v9")
    def xlane():
        for r in (8, 4, 2, 1):
            a(f"v_add_f32 v56, v56, v56 row_ror:{r}")
        a("v_mov_b32 v57, v56")
        a("v_permlane32_swap_b32 v56, v57")
        a("v_add_f32 v56, v56, v57")
    tree(F); xlane()
    a("v_mul_f32 v58, 0x3a800000, v56")
    a("v_mov_b32 v59, v58")
    for k in range(16):
        a(f"v_pk_add_f32 v[{8+2*(k%8)}:{9+2*(k%8)}], v[{F+2*k}:{F+2*k+1}], v[58:59] NEG")
        if k < 8:
            a(f"v_pk_mul_f32 v[{64+2*k}:{65+2*k}], v[{8+2*k}:{9+2*k}], v[{8+2*k}:{9+2*k}]")
        else:
            kk = k - 8
            a(f"v_pk_fma_f32 v[{64+2*kk}:{65+2*kk}], v[{8+2*kk}:{9+2*kk}], v[{8+2*kk}:{9+2*kk}], v[{64+2*kk}:{65+2*kk}]")
    n = 8
    while n > 1:
        for k in range(n // 2):
            a(f"v_pk_add_f32 v[{64+2*k}:{65+2*k}], v[{64+4*k}:{65+4*k}], v[{64+4*k+2}:{64+4*k+3}]")
        n //= 2
    a("v_add_f32 v56, v64, v65")
    xlane()
    a("""
    v_mul_f32 v56, 0x3a800000, v56        ; var
    v_cvt_pk_bf16_f32 v57, v56, v58
    v_lshlrev_b32 v56, 16, v57            ; var_bf
    v_and_b32 v58, s17, v57               ; mean_bf
    v_add_f32 v56, 0x3727c5ac, v56        ; + 1e-5
    v_cvt_pk_bf16_f32 v56, v56, v56
    v_lshlrev_b32 v56, 16, v56
    v_sqrt_f32 v56, v56
    v_cvt_pk_bf16_f32 v56, v56, v56
    v_lshlrev_b32 v56, 16, v56
    v_rcp_f32 v56, v56
    v_mov_b32 v59, v58
    v_mov_b32 v57, v56
    """)
    for k in range(16):
        a(f"v_pk_add_f32 v[{F+2*k}:{F+2*k+1}], v[{F+2*k}:{F+2*k+1}], v[58:59] NEG")
        a(f"v_cvt_pk_bf16_f32 v{8+k}, v{F+2*k}, v{F+2*k+1}")
    for k in range(16):
        a(f"v_lshlrev_b32 v{F+2*k}, 16, v{8+k}")
        a(f"v_and_b32 v{F+2*k+1}, s17, v{8+k}")
        a(f"v_pk_mul_f32 v[{F+2*k}:{F+2*k+1}], v[{F+2*k}:{F+2*k+1}], v[56:57]")
        a(f"v_cvt_pk_bf16_f32 v{8+k}, v{F+2*k}, v{F+2*k+1}")
    for i in range(4):
        b = 8 + 4 * i
        a(f"v_permlane32_swap_b32 v{b}, v{b+2}")
        a(f"v_permlane32_swap_b32 v{b+1}, v{b+3}")
    so = ['0', 's18', 's19', 's20']
    for i in range(4):
        b = 8 + 4 * i
        a(f"buffer_store_dwordx4 v[{b}:{b+3}], v62, s[12:15], {so[i]} offen")
    a("L0_end:")
    a("s_endpgm")
    return a.lines(), 80, 24

def gen_k2(D=8):
    a = Asm()
    assert 72 % D == 0
    RING = D * 4096
    XRA = 2 * RING
    XRB = XRA + 16384
    LDS = XRB + 32768
    ACC = 0
    BF = 32
    AR = 48
    M = AR + D * 8
    vL, vA0, vA1, vB, vT = M, M + 1, M + 2, M + 3, M + 4
    vX = M + 8
    vB2 = M + 16
    vO = M + 24
    vtmp = M + 25
    NV = M + 28
    acc = lambda mb, nb: ACC + (mb * 4 + nb) * 4
    a(f"""
    s_cmp_ge_u32 s2, 256
    s_cbranch_scc1 L2_end
    s_load_dwordx2 s[4:5], s[0:1], 24
    s_load_dwordx2 s[6:7], s[0:1], 56
    s_load_dwordx2 s[8:9], s[0:1], 88
    s_load_dwordx2 s[10:11], s[0:1], 0
    s_load_dwordx2 s[12:13], s[0:1], 64
    s_load_dwordx2 s[14:15], s[0:1], 72
    v_lshrrev_b32 v{vtmp}, 6, v0
    v_and_b32 v{vL}, 63, v0
    v_readfirstlane_b32 s36, v{vtmp}
    s_lshr_b32 s37, s36, 2            ; grp
    s_and_b32 s38, s36, 3             ; mw
    s_and_b32 s46, s2, 7              ; x
    s_lshr_b32 s47, s2, 3             ; j
    s_lshr_b32 s39, s46, 1
    s_lshl_b32 s39, s39, 2
    s_lshr_b32 s48, s47, 3
    s_add_u32 s39, s39, s48           ; mt
    s_and_b32 s40, s46, 1
    s_lshl_b32 s40, s40, 3
    s_and_b32 s48, s47, 7
    s_add_u32 s40, s40, s48           ; nt
    ; A addresses
    s_lshl_b32 s48, s37, 10           ; grp*1024
    v_lshlrev_b32 v{vA0}, 4, v{vL}
    v_xor_b32 v{vA1}, 0x400, v{vA0}
    v_xor_b32 v{vA0}, s48, v{vA0}
    v_xor_b32 v{vA1}, s48, v{vA1}
    v_lshrrev_b32 v{vtmp}, 3, v{vL}
    s_lshl_b32 s48, s38, 3
    v_add_u32 v{vtmp}, s48, v{vtmp}
    v_lshlrev_b32 v{vB}, 11, v{vtmp}
    v_bfe_u32 v{vtmp}, v{vL}, 4, 2
    v_lshlrev_b32 v{vtmp}, 1, v{vtmp}
    v_and_b32 v{vtmp+1}, 7, v{vL}
    v_xor_b32 v{vtmp}, v{vtmp}, v{vtmp+1}
    v_lshl_add_u32 v{vB}, v{vtmp}, 4, v{vB}
    s_lshl_b32 s48, s40, 7
    v_add_u32 v{vB}, s48, v{vB}
    v_lshrrev_b32 v{vtmp}, 2, v{vL}
    v_lshlrev_b32 v{vtmp}, 7, v{vtmp}
    v_and_b32 v{vtmp+1}, 3, v{vL}
    v_lshl_add_u32 v{vtmp}, v{vtmp+1}, 3, v{vtmp}
    s_mul_i32 s48, s37, {RING}
    v_add_u32 v{vtmp}, s48, v{vtmp}
    v_bfe_u32 v{vtmp+1}, v{vL}, 3, 2
    v_lshlrev_b32 v{vtmp+1}, 5, v{vtmp+1}
    """)
    for nb in range(4):
        a(f"v_xor_b32 v{vT+nb}, {nb*32}, v{vtmp+1}")
        a(f"v_add_u32 v{vT+nb}, v{vT+nb}, v{vtmp}")
    a(f"""
    s_lshl_b32 s48, s39, 7
    s_lshl_b32 s49, s38, 5
    s_add_u32 s48, s48, s49
    s_lshl_b32 s49, s37, 4
    s_add_u32 s48, s48, s49
    v_and_b32 v{vtmp}, 15, v{vL}
    v_add_u32 v{vtmp}, s48, v{vtmp}
    v_lshlrev_b32 v{vtmp}, 11, v{vtmp}
    s_lshl_b32 s48, s40, 7
    v_add_u32 v{vtmp}, s48, v{vtmp}
    v_lshrrev_b32 v{vtmp+1}, 4, v{vL}        ; g
    v_lshl_add_u32 v{vO}, v{vtmp+1}, 4, v{vtmp}     ; + g*16 (out)
    v_lshl_add_u32 v{vtmp}, v{vtmp+1}, 3, v{vtmp}   ; + g*8  (x)
    v_lshlrev_b32 v{vtmp+1}, 3, v{vtmp+1}
    v_add_u32 v{vtmp+1}, s48, v{vtmp+1}            ; b2 off
    s_waitcnt lgkmcnt(0)
    ; SRD A
    s_lshl_b32 s48, s39, 2
    s_add_u32 s48, s48, s38                  ; m32blk
    s_mul_i32 s48, s48, 294912
    s_mul_i32 s49, s37, {72*2048}
    s_add_u32 s48, s48, s49
    s_add_u32 s48, s48, {A2_OFF}
    s_add_u32 s16, s8, s48
    s_addc_u32 s17, s9, 0
    s_mov_b32 s18, {72*2048}
    s_mov_b32 s19, 0x20000
    ; SRD B
    s_cmp_eq_u32 s37, 0
    s_cselect_b32 s20, s4, s6
    s_cselect_b32 s21, s5, s7
    s_mov_b32 s22, {3584*2048}
    s_cselect_b32 s22, {1024*2048}, s22
    s_mov_b32 s23, 0x20000
    s_cselect_b32 s42, 0, {40*65536}
    s_cselect_b32 s50, {(33-D)//D}, -1
    s_cselect_b32 s51, {32//D}, -1
    """)
    a(srd(24, 's10', 's11', 4 << 20))
    a(srd(28, 's14', 's15', 4 << 20))
    a(srd(32, 's12', 's13', 2048))
    for nb in range(4):
        a(f"buffer_load_dwordx2 v[{vX+2*nb}:{vX+2*nb+1}], v{vtmp}, s[24:27], 0 offen offset:{32*nb}")
        a(f"buffer_load_dwordx2 v[{vB2+2*nb}:{vB2+2*nb+1}], v{vtmp+1}, s[32:35], 0 offen offset:{32*nb}")
    a(f"""
    s_mul_i32 s44, s37, {RING}
    s_lshl_b32 s48, s38, 10
    s_add_u32 s44, s44, s48                  ; m0 base
    s_mov_b32 s41, 0
    s_mov_b32 s43, 0
    s_mov_b32 s52, {40*65536}
    """)
    def loads(u):
        sl = u % D
        g1 = f"""s_add_u32 m0, s44, {sl*4096}
        buffer_load_dwordx4 v{vB}, s[20:23], s42 offen lds
        s_add_u32 s42, s42, 65536"""
        o = (u & 1) * 2048
        g2 = f"buffer_load_dwordx4 v[{AR+sl*8}:{AR+sl*8+3}], v{vA0}, s[16:19], s41 offen offset:{o}"
        g3 = f"buffer_load_dwordx4 v[{AR+sl*8+4}:{AR+sl*8+7}], v{vA1}, s[16:19], s41 offen offset:{o}"
        if u & 1: g3 += "\ns_add_u32 s41, s41, 4096"
        return [g1, g2, g3]
    def reads(nb, sl):
        return f"""ds_read_b64_tr_b16 v[{BF+nb*4}:{BF+nb*4+1}], v{vT+nb} offset:{sl*4096}
        ds_read_b64_tr_b16 v[{BF+nb*4+2}:{BF+nb*4+3}], v{vT+nb} offset:{sl*4096+2048}"""
    assert D % 2 == 0
    for u in range(D - 1):
        for g in loads(u): a(g)
    for r in range(32): a(f"v_mov_b32 v{ACC+r}, 0")
    a(f"s_waitcnt vmcnt({3*D-4})")
    a("s_barrier")
    for nb in range(4): a(reads(nb, 0))
    a("L2_loop:")
    for s in range(D):
        if s == 32 % D:
            a(f"""s_cmp_lg_u32 s43, s51
            s_cbranch_scc1 L2_nosave
            s_nop 7""")
            a(f"s_lshl_b32 s48, s38, 12")
            a(f"s_add_u32 s48, s48, {XRA}")
            a(f"v_lshlrev_b32 v{vtmp}, 3, v{vL}")
            a(f"v_add_u32 v{vtmp}, s48, v{vtmp}")
            for mb in range(2):
                for nb in range(4):
                    r = acc(mb, nb)
                    a(f"v_cvt_pk_bf16_f32 v{r}, v{r}, v{r+1}")
                    a(f"v_cvt_pk_bf16_f32 v{r+1}, v{r+2}, v{r+3}")
                    a(f"ds_write_b64 v{vtmp}, v[{r}:{r+1}] offset:{(mb*4+nb)*512}")
            a("s_waitcnt lgkmcnt(0)")
            for r in range(32): a(f"v_mov_b32 v{ACC+r}, 0")
            a("s_nop 1")
            a("L2_nosave:")
        a(f"s_waitcnt vmcnt({3*D-7})")
        a("s_barrier")
        if s == 33 % D:
            a(f"""s_cmp_eq_u32 s43, s50
            s_cselect_b32 s20, s6, s20
            s_cselect_b32 s21, s7, s21
            s_cselect_b32 s22, s52, s22
            s_cselect_b32 s42, 0, s42""")
        lg = loads(s + D - 1)
        sl = s
        for nb in range(4):
            a(f"s_waitcnt lgkmcnt(6)")
            for mb in range(2):
                ar = AR + sl * 8 + mb * 4
                a(f"v_mfma_f32_16x16x32_bf16 v[{acc(mb,nb)}:{acc(mb,nb)+3}], v[{BF+nb*4}:{BF+nb*4+3}], v[{ar}:{ar+3}], v[{acc(mb,nb)}:{acc(mb,nb)+3}]")
            a(reads(nb, (s + 1) % D))
            if nb < 3: a(lg[nb])
    a(f"""
    s_add_u32 s43, s43, 1
    s_cmp_lt_u32 s43, {72//D}
    s_cbranch_scc1 L2_loop
    """)
    a(f"""
    s_lshl_b32 s48, s38, 13
    s_xor_b32 s49, s37, 1
    s_lshl_b32 s49, s49, 12
    s_add_u32 s49, s49, s48
    s_add_u32 s49, s49, {XRB}
    v_lshlrev_b32 v{vtmp}, 4, v{vL}
    v_add_u32 v{vtmp+1}, s49, v{vtmp}
    s_lshl_b32 s49, s37, 12
    s_add_u32 s49, s49, s48
    s_add_u32 s49, s49, {XRB}
    v_add_u32 v{vtmp+2}, s49, v{vtmp}
    """)
    for nb in range(4):
        a(f"ds_write_b128 v{vtmp+1}, v[{acc(1,nb)}:{acc(1,nb)+3}] offset:{nb*1024}")
    a(f"""
    s_lshl_b32 s48, s38, 12
    s_lshl_b32 s49, s37, 11
    s_add_u32 s48, s48, s49
    s_add_u32 s48, s48, {XRA}
    v_lshlrev_b32 v{vtmp}, 3, v{vL}
    v_add_u32 v{vtmp}, s48, v{vtmp}
    s_mov_b32 s53, 0xffff0000
    s_waitcnt vmcnt(0) lgkmcnt(0)
    s_barrier
    """)
    P = AR
    PA = AR + 16
    T = AR + 24
    for nb in range(4):
        a(f"ds_read_b128 v[{P+nb*4}:{P+nb*4+3}], v{vtmp+2} offset:{nb*1024}")
        a(f"ds_read_b64 v[{PA+nb*2}:{PA+nb*2+1}], v{vtmp} offset:{nb*512}")
    a("s_waitcnt vmcnt(0) lgkmcnt(0)")
    def unpack(dst, src):
        a(f"v_lshlrev_b32 v{dst}, 16, v{src}")
        a(f"v_and_b32 v{dst+1}, s53, v{src}")
        a(f"v_lshlrev_b32 v{dst+2}, 16, v{src+1}")
        a(f"v_and_b32 v{dst+3}, s53, v{src+1}")
    def add4(dst, x, y):
        a(f"v_pk_add_f32 v[{dst}:{dst+1}], v[{x}:{x+1}], v[{y}:{y+1}]")
        a(f"v_pk_add_f32 v[{dst+2}:{dst+3}], v[{x+2}:{x+3}], v[{y+2}:{y+3}]")
    def pack(dst, src):
        a(f"v_cvt_pk_bf16_f32 v{dst}, v{src}, v{src+1}")
        a(f"v_cvt_pk_bf16_f32 v{dst+1}, v{src+2}, v{src+3}")
    R = BF
    for nb in range(4):
        t0, t1, t2 = T, T + 4, T + 8
        unpack(t0, vX + 2 * nb); unpack(t1, PA + 2 * nb); add4(t0, t0, t1); pack(t2, t0); unpack(t0, t2)
        add4(t1, acc(0, nb), P + nb * 4); pack(t2, t1); unpack(t1, t2)
        unpack(T + 12, vB2 + 2 * nb); add4(t1, t1, T + 12); pack(t2, t1); unpack(t1, t2)
        add4(t0, t0, t1); pack(R + 2 * nb, t0)
    for p in range(2):
        r = R + 4 * p
        a(f"v_permlane32_swap_b32 v{r}, v{r+2}")
        a(f"v_permlane32_swap_b32 v{r+1}, v{r+3}")
        a(f"v_permlane16_swap_b32 v{r}, v{r+2}")
        a(f"v_permlane16_swap_b32 v{r+1}, v{r+3}")
        a(f"buffer_store_dwordx4 v[{r}:{r+3}], v{vO}, s[28:31], 0 offen offset:{64*p}")
    a("L2_end:")
    a("s_endpgm")
    return a.lines(), NV, 56, LDS

def gen_k1():
    a = Asm()
    D = 8
    SLOT = 13312
    slotbase = [k * SLOT for k in range(4)] + [65536 + k * SLOT for k in range(4)]
    WPHI = 65536 + 4 * SLOT
    LDS = WPHI + 2048
    KVF = 65536
    ACC = 152; BF = 100; AR = 36
    acc = lambda mb, nb: ACC + (mb * 13 + nb) * 4
    vL, vA, vD1, vD2 = 1, 2, 3, 4
    vQe, vQo, vH = 5, 6, 7
    vtmp = 12
    vTW, vTR, vA2, vKV = 20, 21, 22, 23
    vB1o = 24
    NV = 256
    for n in range(448):
        assert (n * 5462) >> 16 == n // 12 and (n * 4682) >> 16 == n // 14
    a(f"""
    s_cmp_ge_u32 s2, 256
    s_cbranch_scc1 L1_end
    s_load_dwordx2 s[4:5], s[0:1], 8       ; wqkv
    s_load_dwordx2 s[6:7], s[0:1], 40      ; w1
    s_load_dwordx2 s[8:9], s[0:1], 88      ; ws
    s_load_dwordx2 s[10:11], s[0:1], 16    ; wphi
    s_load_dwordx2 s[12:13], s[0:1], 48    ; b1
    v_lshrrev_b32 v{vtmp}, 6, v0
    v_and_b32 v{vL}, 63, v0
    v_readfirstlane_b32 s36, v{vtmp}       ; wave
    s_and_b32 s46, s2, 7
    s_lshr_b32 s47, s2, 3
    s_lshl_b32 s37, s46, 2
    s_lshr_b32 s48, s47, 3
    s_add_u32 s37, s37, s48                ; head
    s_and_b32 s38, s47, 7                  ; mtile
    v_lshlrev_b32 v{vA}, 4, v{vL}
    s_lshl_b32 s48, s36, 6
    v_add_u32 v{vtmp}, s48, v{vL}                 ; ci
    v_mul_u32_u24 v{vtmp+1}, 5462, v{vtmp}
    v_lshrrev_b32 v{vtmp+1}, 16, v{vtmp+1}        ; row
    v_mul_u32_u24 v{vtmp+2}, 12, v{vtmp+1}
    v_sub_u32 v{vtmp+2}, v{vtmp}, v{vtmp+2}       ; pos
    v_bfe_u32 v{vtmp+3}, v{vtmp+1}, 2, 1
    v_lshlrev_b32 v{vtmp+3}, 1, v{vtmp+3}
    v_xor_b32 v{vtmp+2}, v{vtmp+2}, v{vtmp+3}     ; cc
    v_mul_u32_u24 v{vD1}, 6144, v{vtmp+1}
    v_lshrrev_b32 v{vtmp+3}, 2, v{vtmp+2}
    v_lshl_add_u32 v{vD1}, v{vtmp+3}, 11, v{vD1}
    v_and_b32 v{vtmp+3}, 3, v{vtmp+2}
    v_lshl_add_u32 v{vD1}, v{vtmp+3}, 4, v{vD1}
    s_lshl_b32 s48, s37, 6
    v_add_u32 v{vD1}, s48, v{vD1}
    """)
    def bh_off(dst, ci_s):
        a(f"""
        v_add_u32 v{vtmp}, {ci_s}, v{vL}
        v_mul_u32_u24 v{vtmp+1}, 4682, v{vtmp}
        v_lshrrev_b32 v{vtmp+1}, 16, v{vtmp+1}        ; row
        v_mul_u32_u24 v{vtmp+2}, 14, v{vtmp+1}
        v_sub_u32 v{vtmp+2}, v{vtmp}, v{vtmp+2}       ; cc
        v_mul_u32_u24 v{dst}, 7168, v{vtmp+1}
        v_lshl_add_u32 v{dst}, v{vtmp+2}, 4, v{dst}
        v_mov_b32 v{vtmp+3}, s49
        v_mov_b32 v{vtmp+4}, s50
        v_cmp_gt_u32 vcc, 12, v{vtmp+2}
        v_cndmask_b32 v{vtmp+3}, v{vtmp+4}, v{vtmp+3}, vcc
        v_add_u32 v{dst}, v{dst}, v{vtmp+3}
        """)
    a(f"""
    s_mul_i32 s49, s37, 192
    s_lshl_b32 s50, s37, 5
    s_add_u32 s50, s50, {6144-192}
    s_add_u32 s48, s36, 2
    s_lshl_b32 s48, s48, 6
    """)
    bh_off(vD2, 's48')
    a(f"""
    s_cmp_lt_u32 s36, 6
    s_cbranch_scc1 L1_d1ok
    s_sub_u32 s48, s36, 6
    s_lshl_b32 s48, s48, 6
    """)
    bh_off(vD1, 's48')
    a(f"""
    L1_d1ok:
    v_lshrrev_b32 v{vtmp}, 2, v{vL}
    v_and_b32 v{vtmp+1}, 3, v{vL}
    v_lshlrev_b32 v{vtmp+1}, 3, v{vtmp+1}         ; (l&3)*8
    v_mul_u32_u24 v{vH}, 224, v{vtmp}
    v_add_u32 v{vH}, v{vH}, v{vtmp+1}
    v_add_u32 v{vH}, 6144, v{vH}
    v_mul_u32_u24 v{vQe}, 192, v{vtmp}
    v_add_u32 v{vQe}, v{vQe}, v{vtmp+1}
    v_bfe_u32 v{vtmp+2}, v{vL}, 4, 1
    v_lshlrev_b32 v{vtmp+2}, 5, v{vtmp+2}
    v_sub_u32 v{vQo}, v{vQe}, v{vtmp+2}
    v_add_u32 v{vQe}, v{vQe}, v{vtmp+2}
    v_add_u32 v{vQe+3}, 0x10000, v{vQe}
    v_add_u32 v{vQo+3}, 0x10000, v{vQo}
    v_add_u32 v{vH+3}, 0x10000, v{vH}
    s_waitcnt lgkmcnt(0)
    s_lshl_b32 s39, s38, 3
    s_add_u32 s39, s39, s36                ; m32blk
    s_lshl_b32 s48, s39, 16
    s_add_u32 s16, s8, s48
    s_addc_u32 s17, s9, 0
    s_mov_b32 s18, 65536
    s_mov_b32 s19, 0x20000
    ; SRD 1
    s_cmp_lt_u32 s36, 6
    s_cselect_b32 s20, s4, s6
    s_cselect_b32 s21, s5, s7
    s_mov_b32 s22, {1024*7168}
    s_cselect_b32 s22, {1024*6144}, s22
    s_mov_b32 s23, 0x20000
    s_mov_b32 s45, {32*7168}
    s_cselect_b32 s45, {32*6144}, s45
    """)
    a(srd(24, 's6', 's7', 1024 * 7168))
    a(srd(28, 's8', 's9', WS_RANGE))
    a(srd(32, 's10', 's11', 65536))
    a(srd(52, 's12', 's13', 7168))
    a(f"""
    s_lshl_b32 s40, s36, 10                ; m0 base 1
    s_add_u32 s44, s40, 8192               ; m0 base 2
    s_mov_b32 s41, 0                       ; A soffset
    s_mov_b32 s42, 0                       ; D1 soffset
    s_mov_b32 s43, 0                       ; D2 soffset
    s_mov_b32 s51, 0
    s_cmp_lt_u32 s36, 2
    s_cbranch_scc0 L1_nowphi
    s_add_u32 m0, s40, {WPHI}
    s_lshl_b32 s48, s37, 11
    s_add_u32 s48, s48, s40
    buffer_load_dwordx4 v{vA}, s[32:35], s48 offen lds
    L1_nowphi:
    s_cmp_lt_u32 s36, 5
    s_cselect_b64 vcc, -1, 0
    """)
    lab = [0]
    def loads(u):
        sl = u % D
        lab[0] += 1
        g1 = f"""s_add_u32 m0, s40, {slotbase[sl]}
        buffer_load_dwordx4 v{vD1}, s[20:23], s42 offen lds
        s_add_u32 s42, s42, s45"""
        g2 = f"""s_cbranch_vccz L1_sk{lab[0]}
        s_add_u32 m0, s44, {slotbase[sl]}
        buffer_load_dwordx4 v{vD2}, s[24:27], s43 offen lds
        s_add_u32 s43, s43, {32*7168}
        L1_sk{lab[0]}:"""
        o = (u & 1) * 2048
        g3 = f"buffer_load_dwordx4 v[{AR+sl*8}:{AR+sl*8+3}], v{vA}, s[16:19], s41 offen offset:{o}"
        g4 = f"buffer_load_dwordx4 v[{AR+sl*8+4}:{AR+sl*8+7}], v{vA}, s[16:19], s41 offen offset:{o+1024}"
        if u & 1: g4 += "\ns_add_u32 s41, s41, 4096"
        return [g1, g2, g3, g4]
    def reads(nb, sl):
        up = 3 if sl >= 4 else 0
        base = slotbase[sl] - (65536 if sl >= 4 else 0)
        if nb < 6:
            reg = (vQo if nb & 1 else vQe) + up; o0 = base + 32 * nb; o1 = o0 + 3072
        else:
            reg = vH + up; o0 = base + 32 * (nb - 6); o1 = o0 + 3584
        return f"""ds_read_b64_tr_b16 v[{BF+nb*4}:{BF+nb*4+1}], v{reg} offset:{o0}
        ds_read_b64_tr_b16 v[{BF+nb*4+2}:{BF+nb*4+3}], v{reg} offset:{o1}"""
    for u in range(D - 1):
        for g in loads(u): a(g)
    for r in range(104): a(f"v_mov_b32 v{ACC+r}, 0")
    a(f"s_waitcnt vmcnt({3*D-4})")
    a("s_barrier")
    for nb in range(13): a(reads(nb, 0))
    a("L1_loop:")
    for s in range(D):
        a(f"s_waitcnt vmcnt({3*D-7})")
        a("s_barrier")
        lg = loads(s + D - 1)
        for nb in range(13):
            if nb == 0: a("s_waitcnt lgkmcnt(8)")
            if nb == 9: a("s_waitcnt lgkmcnt(15)")
            for mb in range(2):
                ar = AR + s * 8 + mb * 4
                a(f"v_mfma_f32_16x16x32_bf16 v[{acc(mb,nb)}:{acc(mb,nb)+3}], v[{BF+nb*4}:{BF+nb*4+3}], v[{ar}:{ar+3}], v[{acc(mb,nb)}:{acc(mb,nb)+3}]")
            a(reads(nb, (s + 1) % D))
            if nb in (1, 3, 5, 7): a(lg[(nb - 1) // 2])
    a(f"""
    s_add_u32 s51, s51, 1
    s_cmp_lt_u32 s51, 4
    s_cbranch_scc1 L1_loop
    """)
    WP = 36
    B1 = 44
    PK = 60
    E = 76
    PH = 108
    KF = 124
    ST = 132
    a(f"""
    s_mov_b32 s56, 0xffff0000
    s_mov_b32 s57, {LOG2E}
    v_lshrrev_b32 v{vtmp}, 4, v{vL}               ; g
    v_lshlrev_b32 v{vB1o}, 3, v{vtmp}
    v_and_b32 v{vtmp+1}, 15, v{vL}                ; m
    s_lshl_b32 s48, s36, 5
    v_add_u32 v{vTW}, s48, v{vtmp+1}
    v_lshlrev_b32 v{vTW}, 8, v{vTW}
    v_and_b32 v{vtmp+2}, 7, v{vtmp+1}
    v_lshl_add_u32 v{vTW}, v{vtmp+2}, 5, v{vTW}
    v_lshrrev_b32 v{vtmp+2}, 2, v{vtmp+1}
    v_xor_b32 v{vtmp+2}, v{vtmp+2}, v{vtmp}
    v_lshl_add_u32 v{vTW}, v{vtmp+2}, 3, v{vTW}
    v_lshrrev_b32 v{vtmp+2}, 2, v{vL}
    v_lshlrev_b32 v{vTR}, 8, v{vtmp+2}
    v_and_b32 v{vtmp+2}, 7, v{vtmp+2}
    v_lshl_add_u32 v{vTR}, v{vtmp+2}, 5, v{vTR}
    v_and_b32 v{vtmp+2}, 3, v{vL}
    v_xor_b32 v{vtmp+2}, v{vtmp+2}, v{vtmp}
    v_lshl_add_u32 v{vTR}, v{vtmp+2}, 3, v{vTR}
    v_lshrrev_b32 v{vtmp+2}, 2, v{vL}
    v_lshlrev_b32 v{vtmp+2}, 6, v{vtmp+2}
    v_and_b32 v{vtmp+3}, 3, v{vL}
    v_lshl_add_u32 v{vtmp+2}, v{vtmp+3}, 3, v{vtmp+2}
    v_add_u32 v{vtmp+2}, {WPHI}, v{vtmp+2}
    s_waitcnt vmcnt(0) lgkmcnt(0)
    s_barrier
    """)
    for fb in range(2):
        for jj in range(2):
            a(f"ds_read_b64_tr_b16 v[{WP+fb*4+jj*2}:{WP+fb*4+jj*2+1}], v{vtmp+2} offset:{fb*32+jj*1024}")
    a("s_mul_i32 s48, s37, 192")
    for i in range(6):
        a(f"buffer_load_dwordx2 v[{B1+2*i}:{B1+2*i+1}], v{vB1o}, s[52:55], s48 offen offset:{32*i}")
    a("s_lshl_b32 s48, s37, 5")
    a("s_add_u32 s48, s48, 6144")
    a(f"buffer_load_dwordx2 v[{B1+12}:{B1+13}], v{vB1o}, s[52:55], s48 offen")

    def packfrag(dst, r0, r1):
        a(f"v_cvt_pk_bf16_f32 v{dst}, v{r0}, v{r0+1}")
        a(f"v_cvt_pk_bf16_f32 v{dst+1}, v{r0+2}, v{r0+3}")
        a(f"v_cvt_pk_bf16_f32 v{dst+2}, v{r1}, v{r1+1}")
        a(f"v_cvt_pk_bf16_f32 v{dst+3}, v{r1+2}, v{r1+3}")
    def red4(op, q, t):
        A_, B_, C_, D_ = q
        a(f"v_permlane32_swap_b32 v{A_}, v{B_}")
        a(f"v_permlane32_swap_b32 v{C_}, v{D_}")
        a(f"{op} v{A_}, v{A_}, v{B_}")
        a(f"{op} v{C_}, v{C_}, v{D_}")
        a(f"v_permlane16_swap_b32 v{A_}, v{C_}")
        a(f"{op} v{A_}, v{A_}, v{C_}")
        a(f"v_mov_b32 v{C_}, v{A_}")
        a(f"v_permlane16_swap_b32 v{A_}, v{C_}")
        a(f"v_mov_b32 v{B_}, v{A_}")
        a(f"v_mov_b32 v{D_}, v{C_}")
        a(f"v_permlane32_swap_b32 v{A_}, v{B_}")
        a(f"v_permlane32_swap_b32 v{C_}, v{D_}")
    def feature_map(nb0):
        for mb in range(2): packfrag(KF + mb * 4, acc(mb, nb0), acc(mb, nb0 + 1))
        for mb in range(2):
            for fb in range(2):
                r = PK + (mb * 2 + fb) * 4
                a(f"v_mfma_f32_16x16x32_bf16 v[{r}:{r+3}], v[{WP+fb*4}:{WP+fb*4+3}], v[{KF+mb*4}:{KF+mb*4+3}], 0")
        for k in range(8):
            r = PK + 2 * k
            a(f"v_cvt_pk_bf16_f32 v{E+k}, v{r}, v{r+1}")
        for k in range(8):
            r = PK + 2 * k
            a(f"v_lshlrev_b32 v{r}, 16, v{E+k}")
            a(f"v_and_b32 v{r+1}, s56, v{E+k}")
        for mb in range(2):
            r = PK + mb * 8
            mx, mn = ST + 2 * mb, ST + 2 * mb + 1
            a(f"v_max3_f32 v{mx}, v{r}, v{r+1}, v{r+2}")
            a(f"v_min3_f32 v{mn}, v{r}, v{r+1}, v{r+2}")
            a(f"v_max3_f32 v{mx}, v{mx}, v{r+3}, v{r+4}")
            a(f"v_min3_f32 v{mn}, v{mn}, v{r+3}, v{r+4}")
            a(f"v_max3_f32 v{mx}, v{mx}, v{r+5}, v{r+6}")
            a(f"v_min3_f32 v{mn}, v{mn}, v{r+5}, v{r+6}")
            a(f"v_max_f32 v{mx}, v{mx}, v{r+7}")
            a(f"v_min_f32 v{mn}, v{mn}, v{r+7}")
            a(f"v_sub_f32 v{mn}, 0, v{mn}")
        red4("v_max_f32", [ST, ST + 1, ST + 2, ST + 3], None)
        for k in range(4): a(f"v_mul_f32 v{ST+k}, s57, v{ST+k}")
        for mb in range(2):
            for sg in range(2):
                for k in range(8):
                    e = E + (mb * 2 + sg) * 8 + k
                    p = PK + mb * 8 + k
                    neg = '-' if sg else ''
                    a(f"v_fma_f32 v{e}, {neg}v{p}, s57, -v{ST+2*mb+sg}")
                for k in range(8):
                    e = E + (mb * 2 + sg) * 8 + k
                    a(f"v_exp_f32 v{e}, v{e}")
        for q in range(4):
            e = E + q * 8; s_ = ST + 4 + q
            a(f"v_pk_add_f32 v[{PK}:{PK+1}], v[{e}:{e+1}], v[{e+2}:{e+3}]")
            a(f"v_pk_add_f32 v[{PK+2}:{PK+3}], v[{e+4}:{e+5}], v[{e+6}:{e+7}]")
            a(f"v_pk_add_f32 v[{PK}:{PK+1}], v[{PK}:{PK+1}], v[{PK+2}:{PK+3}]")
            a(f"v_add_f32 v{s_}, v{PK}, v{PK+1}")
        red4("v_add_f32", [ST + 4, ST + 5, ST + 6, ST + 7], None)
        for q in range(4): a(f"v_rcp_f32 v{ST+4+q}, v{ST+4+q}")
        for q in range(4):
            e = E + q * 8
            for k in range(8): a(f"v_mul_f32 v{e+k}, v{ST+4+q}, v{e+k}")
            for k in range(4): a(f"v_cvt_pk_bf16_f32 v{PH+q*4+k}, v{e+2*k}, v{e+2*k+1}")
    a("s_waitcnt lgkmcnt(0)")
    feature_map(2)
    for mb in range(2): packfrag(KF + mb * 4, acc(mb, 4), acc(mb, 5))
    for Q in range(6):
        a(f"v_xor_b32 v{vtmp}, {Q<<5}, v{vTW}")
        for mb in range(2):
            src = PH + (mb * 2 + (Q >> 1)) * 4 + (Q & 1) * 2 if Q < 4 else KF + mb * 4 + (Q - 4) * 2
            a(f"ds_write_b64 v{vtmp}, v[{src}:{src+1}] offset:{mb*4096}")
    a(f"""
    s_and_b32 s48, s36, 3
    s_lshl_b32 s48, s48, 5
    v_xor_b32 v{vtmp}, s48, v{vTR}
    s_lshr_b32 s48, s36, 2
    s_add_u32 s48, s48, 4
    s_lshl_b32 s48, s48, 5
    v_xor_b32 v{vtmp+1}, s48, v{vTR}        ; v cols Q = 4 + (w>>2)
    v_mov_b32 v{ST}, 0x3f803f80
    v_mov_b32 v{ST+1}, 0x3f803f80
    v_mov_b32 v{ST+2}, 0x3f803f80
    v_mov_b32 v{ST+3}, 0x3f803f80
    s_waitcnt lgkmcnt(0)
    s_barrier
    """)
    FA = 60; FB_ = 92
    KVT = 124; ZT = 128
    for ks in range(8):
        for jj in range(2):
            a(f"ds_read_b64_tr_b16 v[{FA+ks*4+jj*2}:{FA+ks*4+jj*2+1}], v{vtmp} offset:{ks*8192+jj*4096}")
        for jj in range(2):
            a(f"ds_read_b64_tr_b16 v[{FB_+ks*4+jj*2}:{FB_+ks*4+jj*2+1}], v{vtmp+1} offset:{ks*8192+jj*4096}")
        if ks >= 2:
            k2 = ks - 2
            a("s_waitcnt lgkmcnt(8)")
            c = '0' if k2 == 0 else f"v[{KVT}:{KVT+3}]"
            a(f"v_mfma_f32_16x16x32_bf16 v[{KVT}:{KVT+3}], v[{FA+k2*4}:{FA+k2*4+3}], v[{FB_+k2*4}:{FB_+k2*4+3}], {c}")
            c = '0' if k2 == 0 else f"v[{ZT}:{ZT+3}]"
            a(f"v_mfma_f32_16x16x32_bf16 v[{ZT}:{ZT+3}], v[{FA+k2*4}:{FA+k2*4+3}], v[{ST}:{ST+3}], {c}")
    for k2 in (6, 7):
        a(f"s_waitcnt lgkmcnt({4 if k2 == 6 else 0})")
        a(f"v_mfma_f32_16x16x32_bf16 v[{KVT}:{KVT+3}], v[{FA+k2*4}:{FA+k2*4+3}], v[{FB_+k2*4}:{FB_+k2*4+3}], v[{KVT}:{KVT+3}]")
        a(f"v_mfma_f32_16x16x32_bf16 v[{ZT}:{ZT+3}], v[{FA+k2*4}:{FA+k2*4+3}], v[{ST}:{ST+3}], v[{ZT}:{ZT+3}]")
    a(f"""
    s_lshl_b32 s48, s37, 3
    s_add_u32 s48, s48, s38
    s_mul_i32 s48, s48, 12288
    s_add_u32 s48, s48, {KVP_OFF}
    s_add_u32 s48, s48, s40                ; + w*1024
    buffer_store_dwordx4 v[{KVT}:{KVT+3}], v{vA}, s[28:31], s48 offen sc1
    s_cmp_lt_u32 s36, 4
    s_cbranch_scc0 L1_noz
    s_add_u32 s48, s48, 8192
    buffer_store_dwordx4 v[{ZT}:{ZT+3}], v{vA}, s[28:31], s48 offen sc1
    L1_noz:
    s_waitcnt vmcnt(0)
    s_barrier
    s_lshl_b32 s58, s37, 7
    s_add_u32 s58, s58, {FLAG_OFF}
    s_cmp_eq_u32 s36, 0
    s_cbranch_scc0 L1_noflag
    s_lshl_b32 s48, s38, 2
    s_add_u32 s48, s48, s58
    v_mov_b32 v{vtmp}, 0
    v_mov_b32 v{vtmp+1}, 1
    s_mov_b64 exec, 1
    buffer_store_dword v{vtmp+1}, v{vtmp}, s[28:31], s48 offen sc1
    s_mov_b64 exec, -1
    L1_noflag:
    s_mul_i32 s59, s39, 294912
    s_add_u32 s59, s59, {A2_OFF}
    """)
    BI = 60
    HT = 64
    HP = 76
    for i in range(7):
        nb = 6 + i
        a(f"v_lshlrev_b32 v{BI}, 16, v{B1+2*i}")
        a(f"v_and_b32 v{BI+1}, s56, v{B1+2*i}")
        a(f"v_lshlrev_b32 v{BI+2}, 16, v{B1+2*i+1}")
        a(f"v_and_b32 v{BI+3}, s56, v{B1+2*i+1}")
        for mb in range(2):
            r = acc(mb, nb); t = HT + mb * 2
            for hh in range(2):
                rr = r + 2 * hh; tt = t + hh
                a(f"v_cvt_pk_bf16_f32 v{tt}, v{rr}, v{rr+1}")
                a(f"v_lshlrev_b32 v{rr}, 16, v{tt}")
                a(f"v_and_b32 v{rr+1}, s56, v{tt}")
                a(f"v_pk_add_f32 v[{rr}:{rr+1}], v[{rr}:{rr+1}], v[{BI+2*hh}:{BI+2*hh+1}]")
                a(f"v_max_f32 v{rr}, 0, v{rr}")
                a(f"v_max_f32 v{rr+1}, 0, v{rr+1}")
                a(f"v_cvt_pk_bf16_f32 v{tt}, v{rr}, v{rr+1}")
                a(f"v_lshlrev_b32 v{rr}, 16, v{tt}")
                a(f"v_and_b32 v{rr+1}, s56, v{tt}")
                a(f"v_pk_mul_f32 v[{rr}:{rr+1}], v[{rr}:{rr+1}], v[{rr}:{rr+1}]")
                a(f"v_cvt_pk_bf16_f32 v{HP+mb*16+i*2+hh}, v{rr}, v{rr+1}")
        if i in (1, 3, 5):
            c = i // 2
            if c == 0:
                a(f"s_mul_i32 s48, s37, {3*2048}")
                a(f"s_add_u32 s48, s48, s59")
                a(f"s_add_u32 s48, s48, {32*2048}")
            if c == 2:
                a(f"s_add_u32 s48, s48, 4096")
            for mb in range(2):
                r = HP + mb * 16 + c * 4
                a(f"buffer_store_dwordx4 v[{r}:{r+3}], v{vA}, s[28:31], s48 offen offset:{(c&1)*2048+mb*1024}")
    a(f"""
    s_lshr_b32 s48, s37, 1
    s_lshl_b32 s48, s48, 11
    s_add_u32 s48, s48, s59
    s_add_u32 s48, s48, {128*2048}
    s_and_b32 s49, s37, 1
    s_lshl_b32 s49, s49, 3
    s_add_u32 s48, s48, s49
    """)
    for mb in range(2):
        r = HP + mb * 16 + 12
        a(f"buffer_store_dwordx2 v[{r}:{r+1}], v{vA}, s[28:31], s48 offen offset:{mb*1024}")
    a("s_waitcnt vmcnt(0)")
    feature_map(0)
    a(f"""
    s_cmp_eq_u32 s36, 0
    s_cbranch_scc0 L1_nopoll
    v_and_b32 v{vtmp}, 7, v{vL}
    v_lshlrev_b32 v{vtmp}, 2, v{vtmp}
    s_mov_b32 s49, 0
    L1_poll:
    buffer_load_dword v{vtmp+1}, v{vtmp}, s[28:31], s58 offen sc1
    s_waitcnt vmcnt(0)
    v_cmp_ne_u32 vcc, 1, v{vtmp+1}
    s_add_u32 s49, s49, 1
    s_cmp_eq_u64 vcc, 0
    s_cbranch_scc1 L1_nopoll
    s_sleep 2
    s_cmp_lt_u32 s49, 0x40000
    s_cbranch_scc1 L1_poll
    L1_nopoll:
    s_barrier
    s_mul_i32 s48, s37, {8*12288}
    s_add_u32 s48, s48, {KVP_OFF}
    s_add_u32 s48, s48, s40
    """)
    PL = 60
    ZL = 152
    for mt in range(8):
        a(f"buffer_load_dwordx4 v[{PL+mt*4}:{PL+mt*4+3}], v{vA}, s[28:31], s48 offen sc1")
        a(f"s_add_u32 s48, s48, 12288")
    a(f"""
    s_lshr_b32 s49, s36, 1
    s_lshl_b32 s49, s49, 10
    s_and_b32 s50, s36, 1
    s_lshl_b32 s50, s50, 3
    s_add_u32 s49, s49, s50
    s_add_u32 s49, s49, {KVF}
    v_add_u32 v{vtmp}, s49, v{vA}
    s_cmp_lt_u32 s36, 4
    s_cbranch_scc0 L1_noz2
    s_sub_u32 s48, s48, {8*12288-8192}
    """)
    for mt in range(8):
        a(f"buffer_load_dwordx4 v[{ZL+mt*4}:{ZL+mt*4+3}], v{vA}, s[28:31], s48 offen sc1")
        a(f"s_add_u32 s48, s48, 12288")
    def sum8(P):
        for mt in range(1, 8):
            a(f"v_pk_add_f32 v[{P}:{P+1}], v[{P}:{P+1}], v[{P+mt*4}:{P+mt*4+1}]")
            a(f"v_pk_add_f32 v[{P+2}:{P+3}], v[{P+2}:{P+3}], v[{P+mt*4+2}:{P+mt*4+3}]")
        a(f"v_cvt_pk_bf16_f32 v{P}, v{P}, v{P+1}")
        a(f"v_cvt_pk_bf16_f32 v{P+1}, v{P+2}, v{P+3}")
    a("s_waitcnt vmcnt(0)")
    sum8(ZL)
    a(f"ds_write_b64 v{vtmp}, v[{ZL}:{ZL+1}] offset:4096")
    a("L1_noz2:")
    a("s_waitcnt vmcnt(0)")
    sum8(PL)
    a(f"ds_write_b64 v{vtmp}, v[{PL}:{PL+1}]")
    a(f"v_add_u32 v{vtmp+1}, {KVF}, v{vA}")
    a("s_waitcnt lgkmcnt(0)")
    a("s_barrier")
    KV = 60
    for t in range(6):
        a(f"ds_read_b128 v[{KV+t*4}:{KV+t*4+3}], v{vtmp+1} offset:{t*1024}")
    a("s_waitcnt lgkmcnt(0)")
    O = 152
    for mb in range(2):
        for db in range(3):
            r = O + (mb * 3 + db) * 4
            a(f"v_mfma_f32_16x16x32_bf16 v[{r}:{r+3}], v[{KV+db*8}:{KV+db*8+3}], v[{PH+mb*8}:{PH+mb*8+3}], 0")
    for mb in range(2):
        for db in range(3):
            r = O + (mb * 3 + db) * 4
            a(f"v_mfma_f32_16x16x32_bf16 v[{r}:{r+3}], v[{KV+db*8+4}:{KV+db*8+7}], v[{PH+mb*8+4}:{PH+mb*8+7}], v[{r}:{r+3}]")
    a(f"s_lshl_b32 s48, s37, 11")
    a(f"s_add_u32 s48, s48, s59")
    for mb in range(2):
        dn = O + (mb * 3 + 2) * 4
        a(f"v_cvt_pk_bf16_f32 v{dn}, v{dn}, v{dn}")
        a(f"v_lshlrev_b32 v{dn}, 16, v{dn}")
        a(f"v_add_f32 v{dn}, 0x358637bd, v{dn}")
        a(f"v_cvt_pk_bf16_f32 v{dn}, v{dn}, v{dn}")
        a(f"v_lshlrev_b32 v{dn}, 16, v{dn}")
        a(f"v_rcp_f32 v{dn}, v{dn}")
        r = O + mb * 12
        t = 92 + mb * 4
        for k in range(4):
            a(f"v_cvt_pk_bf16_f32 v{t+k}, v{r+2*k}, v{r+2*k+1}")
            a(f"v_lshlrev_b32 v{r+2*k}, 16, v{t+k}")
            a(f"v_and_b32 v{r+2*k+1}, s56, v{t+k}")
            a(f"v_mul_f32 v{r+2*k}, v{dn}, v{r+2*k}")
            a(f"v_mul_f32 v{r+2*k+1}, v{dn}, v{r+2*k+1}")
            a(f"v_cvt_pk_bf16_f32 v{t+k}, v{r+2*k}, v{r+2*k+1}")
        a(f"buffer_store_dwordx4 v[{t}:{t+3}], v{vA}, s[28:31], s48 offen offset:{mb*1024}")
    a("L1_end:")
    a("s_endpgm")
    return a.lines(), NV, 64, LDS

HEADER = """; parallel_sum( hedgehog linear attention , squared-relu MLP ) on layernorm(x), + residual
"""

def build(path, k2D=8):
    k0, v0, s0 = gen_k0()
    k1, v1, s1, l1 = gen_k1()
    k2, v2, s2, l2 = gen_k2(k2D)
    t = [HEADER.rstrip(),
         "; @launch kernel=ln_kernel grid=(256,1,1) block=(256,1,1) lds=0",
         f"; @launch kernel=g1_kernel grid=(256,1,1) block=(512,1,1) lds={l1}",
         f"; @launch kernel=g2_kernel grid=(256,1,1) block=(512,1,1) lds={l2}",
         '.amdgcn_target "amdgcn-amd-amdhsa--gfx950"', '.text']
    for name, body in (("ln_kernel", k0), ("g1_kernel", k1), ("g2_kernel", k2)):
        rep = []
        body = fix_hazards(body, rep)
        body = [b.replace(' NEG', ' neg_lo:[0,1] neg_hi:[0,1]') for b in body]
        t += kernel_text(name, body, 0, 0)
    t += ['.section .rodata,"a"']
    t += kd_text("ln_kernel", v0, s0) + kd_text("g1_kernel", v1, s1) + kd_text("g2_kernel", v2, s2)
    open(path, 'w').write('\n'.join(t) + '\n')

if __name__ == "__main__":
    build(sys.argv[1] if len(sys.argv) > 1 else "parallel_sum__linear_kernel_hedgehog__dense_activation_squared_relu__prompt.s")
```

```python
import sys
from asmlib import *

XN_OFF = 0
A2_OFF = 4 << 20
KVP_OFF = 24 << 20
FLAG_OFF = 28 << 20
WS_RANGE = 32 << 20
LOG2E = 0x3fb8aa3b

PROF = False
PREF0 = 0
PROF_OFF = 30 << 20
class Prof:
    def __init__(self, a, sbase, kidx):
        self.a = a; self.sb = sbase; self.n = 0; self.k = kidx
    def stamp(self, real=False):
        if not PROF: return
        r = self.sb + 2 * self.n
        self.a(f"s_waitcnt lgkmcnt(0)")
        self.a(f"{'s_memrealtime' if real else 's_memtime'} s[{r}:{r+1}]")
        self.a(f"s_waitcnt lgkmcnt(0)")
        self.n += 1
    def flush(self, srd, vtmp, swave, stmp):
        if not PROF: return
        a = self.a
        a(f"s_lshl_b32 s{stmp}, s2, 3")
        a(f"s_add_u32 s{stmp}, s{stmp}, s{swave}")
        a(f"s_lshl_b32 s{stmp}, s{stmp}, 7")
        a(f"s_add_u32 s{stmp}, s{stmp}, {PROF_OFF + self.k * (256*8*128)}")
        a(f"v_mov_b32 v{vtmp}, 0")
        a("s_mov_b64 exec, 1")
        for i in range(self.n):
            r = self.sb + 2 * i
            a(f"v_mov_b32 v{vtmp+2}, s{r}")
            a(f"v_mov_b32 v{vtmp+3}, s{r+1}")
            a(f"buffer_store_dwordx2 v[{vtmp+2}:{vtmp+3}], v{vtmp}, s[{srd}:{srd+3}], s{stmp} offen offset:{8*i}")
            a("s_nop 1")
        a("s_mov_b64 exec, -1")

def srd(a, base_lo, base_hi, nrec):
    return f"""s_mov_b32 s{a}, {base_lo}
s_mov_b32 s{a+1}, {base_hi}
s_mov_b32 s{a+2}, {nrec}
s_mov_b32 s{a+3}, 0x20000"""

def gen_k0():
    a = Asm()
    a("""
    s_cmp_ge_u32 s2, 256
    s_cbranch_scc1 L0_end
    s_load_dwordx2 s[4:5], s[0:1], 0
    s_load_dwordx2 s[6:7], s[0:1], 88
    v_and_b32 v1, 63, v0              ; lane
    v_lshrrev_b32 v2, 6, v0           ; wave
    v_bfe_u32 v3, v1, 4, 1            ; r
    v_and_b32 v4, 15, v1              ; j
    v_lshrrev_b32 v5, 5, v1           ; hi
    s_lshl_b32 s3, s2, 3
    v_lshl_add_u32 v6, v2, 1, v3
    v_add_u32 v6, s3, v6              ; m
    v_lshrrev_b32 v7, 1, v4           ; j>>1
    v_and_b32 v60, 1, v4              ; j&1
    v_lshlrev_b32 v61, 2, v7
    v_lshl_add_u32 v61, v5, 1, v61
    v_add_u32 v61, v61, v60           ; piece
    v_lshlrev_b32 v61, 4, v61
    v_lshl_add_u32 v61, v6, 11, v61   ; voff_in
    v_lshl_add_u32 v62, v60, 1, v5    ; g
    v_lshlrev_b32 v62, 4, v62
    v_and_b32 v63, 15, v6
    v_add_u32 v62, v62, v63
    v_lshlrev_b32 v62, 4, v62         ; (g*16 + m&15)*16
    v_lshl_add_u32 v62, v7, 11, v62   ; + (j>>1)*2048
    v_bfe_u32 v63, v6, 4, 1
    v_lshl_add_u32 v62, v63, 10, v62  ; + mb*1024
    v_lshrrev_b32 v63, 5, v6
    v_lshl_add_u32 v62, v63, 16, v62  ; + m32blk*65536
    s_waitcnt lgkmcnt(0)
    """)
    a(srd(8, 's4', 's5', 4 << 20))
    a(srd(12, 's6', 's7', WS_RANGE))
    for i in range(4):
        a(f"buffer_load_dwordx4 v[{8+4*i}:{11+4*i}], v61, s[8:11], 0 offen offset:{512*i}")
    if PREF0:
        a("""
        s_load_dwordx2 s[24:25], s[0:1], 8
        s_load_dwordx2 s[28:29], s[0:1], 40
        s_load_dwordx2 s[32:33], s[0:1], 56
        s_load_dwordx2 s[36:37], s[0:1], 24
        s_lshl_b32 s21, s2, 8
        v_add_u32 v80, s21, v0
        v_lshlrev_b32 v80, 7, v80
        s_waitcnt lgkmcnt(0)
        s_mov_b32 s26, 6291456
        s_mov_b32 s27, 0x20000
        s_mov_b32 s30, 7340032
        s_mov_b32 s31, 0x20000
        s_mov_b32 s34, 7340032
        s_mov_b32 s35, 0x20000
        s_mov_b32 s38, 2097152
        s_mov_b32 s39, 0x20000
        buffer_load_dword v81, v80, s[24:27], 0 offen
        buffer_load_dword v82, v80, s[28:31], 0 offen
        """)
        if PREF0 > 1:
            a("""
            buffer_load_dword v83, v80, s[32:35], 0 offen
            buffer_load_dword v84, v80, s[36:39], 0 offen
            """)
    a(f"""
    s_cmp_lg_u32 s2, 0
    s_cbranch_scc1 L0_noflag
    v_mov_b32 v56, 0
    v_mov_b32 v57, 0
    v_mov_b32 v58, 0
    v_mov_b32 v59, 0
    v_lshlrev_b32 v2, 4, v0
    s_mov_b32 s16, {FLAG_OFF}
    buffer_store_dwordx4 v[56:59], v2, s[12:15], s16 offen
    L0_noflag:
    s_mov_b32 s17, 0xffff0000
    s_mov_b32 s18, 16384
    s_mov_b32 s19, 32768
    s_mov_b32 s20, 49152
    """)
    a("s_waitcnt vmcnt(0)" if not PREF0 else "s_waitcnt vmcnt(%d)" % (2 * PREF0))
    F = 24
    for k in range(16):
        a(f"v_lshlrev_b32 v{F+2*k}, 16, v{8+k}")
        a(f"v_and_b32 v{F+2*k+1}, s17, v{8+k}")
    def tree(src):
        for k in range(8):
            a(f"v_pk_add_f32 v[{8+2*k}:{9+2*k}], v[{src+4*k}:{src+4*k+1}], v[{src+4*k+2}:{src+4*k+3}]")
        n = 8
        while n > 1:
            for k in range(n // 2):
                a(f"v_pk_add_f32 v[{8+2*k}:{9+2*k}], v[{8+4*k}:{9+4*k}], v[{8+4*k+2}:{8+4*k+3}]")
            n //= 2
        a("v_add_f32 v56, v8, v9")
    def xlane():
        for r in (8, 4, 2, 1):
            a(f"v_add_f32 v56, v56, v56 row_ror:{r}")
        a("v_mov_b32 v57, v56")
        a("v_permlane32_swap_b32 v56, v57")
        a("v_add_f32 v56, v56, v57")
    tree(F); xlane()
    a("v_mul_f32 v58, 0x3a800000, v56")
    a("v_mov_b32 v59, v58")
    for k in range(16):
        a(f"v_pk_add_f32 v[{8+2*(k%8)}:{9+2*(k%8)}], v[{F+2*k}:{F+2*k+1}], v[58:59] NEG")
        if k < 8:
            a(f"v_pk_mul_f32 v[{64+2*k}:{65+2*k}], v[{8+2*k}:{9+2*k}], v[{8+2*k}:{9+2*k}]")
        else:
            kk = k - 8
            a(f"v_pk_fma_f32 v[{64+2*kk}:{65+2*kk}], v[{8+2*kk}:{9+2*kk}], v[{8+2*kk}:{9+2*kk}], v[{64+2*kk}:{65+2*kk}]")
    n = 8
    while n > 1:
        for k in range(n // 2):
            a(f"v_pk_add_f32 v[{64+2*k}:{65+2*k}], v[{64+4*k}:{65+4*k}], v[{64+4*k+2}:{64+4*k+3}]")
        n //= 2
    a("v_add_f32 v56, v64, v65")
    xlane()
    a("""
    v_mul_f32 v56, 0x3a800000, v56        ; var
    v_cvt_pk_bf16_f32 v57, v56, v58
    v_lshlrev_b32 v56, 16, v57            ; var_bf
    v_and_b32 v58, s17, v57               ; mean_bf
    v_add_f32 v56, 0x3727c5ac, v56        ; + 1e-5
    v_cvt_pk_bf16_f32 v56, v56, v56
    v_lshlrev_b32 v56, 16, v56
    v_sqrt_f32 v56, v56
    v_cvt_pk_bf16_f32 v56, v56, v56
    v_lshlrev_b32 v56, 16, v56
    v_rcp_f32 v56, v56
    v_mov_b32 v59, v58
    v_mov_b32 v57, v56
    """)
    for k in range(16):
        a(f"v_pk_add_f32 v[{F+2*k}:{F+2*k+1}], v[{F+2*k}:{F+2*k+1}], v[58:59] NEG")
        a(f"v_cvt_pk_bf16_f32 v{8+k}, v{F+2*k}, v{F+2*k+1}")
    for k in range(16):
        a(f"v_lshlrev_b32 v{F+2*k}, 16, v{8+k}")
        a(f"v_and_b32 v{F+2*k+1}, s17, v{8+k}")
        a(f"v_pk_mul_f32 v[{F+2*k}:{F+2*k+1}], v[{F+2*k}:{F+2*k+1}], v[56:57]")
        a(f"v_cvt_pk_bf16_f32 v{8+k}, v{F+2*k}, v{F+2*k+1}")
    for i in range(4):
        b = 8 + 4 * i
        a(f"v_permlane32_swap_b32 v{b}, v{b+2}")
        a(f"v_permlane32_swap_b32 v{b+1}, v{b+3}")
    so = ['0', 's18', 's19', 's20']
    for i in range(4):
        b = 8 + 4 * i
        a(f"buffer_store_dwordx4 v[{b}:{b+3}], v62, s[12:15], {so[i]} offen")
    a("L0_end:")
    a("s_endpgm")
    return a.lines(), 88, 48

def gen_k2(D=8):
    a = Asm()
    assert 72 % D == 0
    RING = D * 4096
    XRA = 2 * RING
    XRB = XRA + 16384
    LDS = XRB + 32768
    ACC = 0
    BF = 32
    AR = 48
    M = AR + D * 8
    vL, vA0, vA1, vB, vT = M, M + 1, M + 2, M + 3, M + 4
    vX = M + 8
    vB2 = M + 16
    vO = M + 24
    vtmp = M + 25
    NV = M + 28
    acc = lambda mb, nb: ACC + (mb * 4 + nb) * 4
    pf = Prof(a, 64, 2)
    a(f"""
    s_cmp_ge_u32 s2, 256
    s_cbranch_scc1 L2_end
    """)
    pf.stamp(True); pf.stamp()
    a(f"""
    s_load_dwordx2 s[4:5], s[0:1], 24
    s_load_dwordx2 s[6:7], s[0:1], 56
    s_load_dwordx2 s[8:9], s[0:1], 88
    s_load_dwordx2 s[10:11], s[0:1], 0
    s_load_dwordx2 s[12:13], s[0:1], 64
    s_load_dwordx2 s[14:15], s[0:1], 72
    v_lshrrev_b32 v{vtmp}, 6, v0
    v_and_b32 v{vL}, 63, v0
    v_readfirstlane_b32 s36, v{vtmp}
    s_lshr_b32 s37, s36, 2            ; grp
    s_and_b32 s38, s36, 3             ; mw
    s_and_b32 s46, s2, 7              ; x
    s_lshr_b32 s47, s2, 3             ; j
    s_lshr_b32 s39, s46, 1
    s_lshl_b32 s39, s39, 2
    s_lshr_b32 s48, s47, 3
    s_add_u32 s39, s39, s48           ; mt
    s_and_b32 s40, s46, 1
    s_lshl_b32 s40, s40, 3
    s_and_b32 s48, s47, 7
    s_add_u32 s40, s40, s48           ; nt
    ; A addresses
    s_lshl_b32 s48, s37, 10           ; grp*1024
    v_lshlrev_b32 v{vA0}, 4, v{vL}
    v_xor_b32 v{vA1}, 0x400, v{vA0}
    v_xor_b32 v{vA0}, s48, v{vA0}
    v_xor_b32 v{vA1}, s48, v{vA1}
    v_lshrrev_b32 v{vtmp}, 3, v{vL}
    s_lshl_b32 s48, s38, 3
    v_add_u32 v{vtmp}, s48, v{vtmp}
    v_lshlrev_b32 v{vB}, 11, v{vtmp}
    v_bfe_u32 v{vtmp}, v{vL}, 4, 2
    v_lshlrev_b32 v{vtmp}, 1, v{vtmp}
    v_and_b32 v{vtmp+1}, 7, v{vL}
    v_xor_b32 v{vtmp}, v{vtmp}, v{vtmp+1}
    v_lshl_add_u32 v{vB}, v{vtmp}, 4, v{vB}
    s_lshl_b32 s48, s40, 7
    v_add_u32 v{vB}, s48, v{vB}
    v_lshrrev_b32 v{vtmp}, 2, v{vL}
    v_lshlrev_b32 v{vtmp}, 7, v{vtmp}
    v_and_b32 v{vtmp+1}, 3, v{vL}
    v_lshl_add_u32 v{vtmp}, v{vtmp+1}, 3, v{vtmp}
    s_mul_i32 s48, s37, {RING}
    v_add_u32 v{vtmp}, s48, v{vtmp}
    v_bfe_u32 v{vtmp+1}, v{vL}, 3, 2
    v_lshlrev_b32 v{vtmp+1}, 5, v{vtmp+1}
    """)
    for nb in range(4):
        a(f"v_xor_b32 v{vT+nb}, {nb*32}, v{vtmp+1}")
        a(f"v_add_u32 v{vT+nb}, v{vT+nb}, v{vtmp}")
    a(f"""
    s_lshl_b32 s48, s39, 7
    s_lshl_b32 s49, s38, 5
    s_add_u32 s48, s48, s49
    s_lshl_b32 s49, s37, 4
    s_add_u32 s48, s48, s49
    v_and_b32 v{vtmp}, 15, v{vL}
    v_add_u32 v{vtmp}, s48, v{vtmp}
    v_lshlrev_b32 v{vtmp}, 11, v{vtmp}
    s_lshl_b32 s48, s40, 7
    v_add_u32 v{vtmp}, s48, v{vtmp}
    v_lshrrev_b32 v{vtmp+1}, 4, v{vL}        ; g
    v_lshl_add_u32 v{vO}, v{vtmp+1}, 4, v{vtmp}     ; + g*16 (out)
    v_lshl_add_u32 v{vtmp}, v{vtmp+1}, 3, v{vtmp}   ; + g*8  (x)
    v_lshlrev_b32 v{vtmp+1}, 3, v{vtmp+1}
    v_add_u32 v{vtmp+1}, s48, v{vtmp+1}            ; b2 off
    s_waitcnt lgkmcnt(0)
    ; SRD A
    s_lshl_b32 s48, s39, 2
    s_add_u32 s48, s48, s38                  ; m32blk
    s_mul_i32 s48, s48, 294912
    s_mul_i32 s49, s37, {72*2048}
    s_add_u32 s48, s48, s49
    s_add_u32 s48, s48, {A2_OFF}
    s_add_u32 s16, s8, s48
    s_addc_u32 s17, s9, 0
    s_mov_b32 s18, {72*2048}
    s_mov_b32 s19, 0x20000
    ; SRD B
    s_cmp_eq_u32 s37, 0
    s_cselect_b32 s20, s4, s6
    s_cselect_b32 s21, s5, s7
    s_mov_b32 s22, {3584*2048}
    s_cselect_b32 s22, {1024*2048}, s22
    s_mov_b32 s23, 0x20000
    s_cselect_b32 s42, 0, {40*65536}
    s_cselect_b32 s50, {(33-D)//D}, -1
    s_cselect_b32 s51, {32//D}, -1
    """)
    a(srd(24, 's10', 's11', 4 << 20))
    a(srd(28, 's14', 's15', 4 << 20))
    a(srd(32, 's12', 's13', 2048))
    for nb in range(4):
        a(f"buffer_load_dwordx2 v[{vX+2*nb}:{vX+2*nb+1}], v{vtmp}, s[24:27], 0 offen offset:{32*nb}")
        a(f"buffer_load_dwordx2 v[{vB2+2*nb}:{vB2+2*nb+1}], v{vtmp+1}, s[32:35], 0 offen offset:{32*nb}")
    a(f"""
    s_mul_i32 s44, s37, {RING}
    s_lshl_b32 s48, s38, 10
    s_add_u32 s44, s44, s48                  ; m0 base
    s_mov_b32 s41, 0
    s_mov_b32 s43, 0
    s_mov_b32 s52, {40*65536}
    """)
    def loads(u):
        sl = u % D
        g1 = f"""s_add_u32 m0, s44, {sl*4096}
        buffer_load_dwordx4 v{vB}, s[20:23], s42 offen lds
        s_add_u32 s42, s42, 65536"""
        o = (u & 1) * 2048
        g2 = f"buffer_load_dwordx4 v[{AR+sl*8}:{AR+sl*8+3}], v{vA0}, s[16:19], s41 offen offset:{o}"
        g3 = f"buffer_load_dwordx4 v[{AR+sl*8+4}:{AR+sl*8+7}], v{vA1}, s[16:19], s41 offen offset:{o}"
        if u & 1: g3 += "\ns_add_u32 s41, s41, 4096"
        return [g1, g2, g3]
    def reads(nb, sl):
        return f"""ds_read_b64_tr_b16 v[{BF+nb*4}:{BF+nb*4+1}], v{vT+nb} offset:{sl*4096}
        ds_read_b64_tr_b16 v[{BF+nb*4+2}:{BF+nb*4+3}], v{vT+nb} offset:{sl*4096+2048}"""
    assert D % 2 == 0
    for u in range(D - 1):
        for g in loads(u): a(g)
    for r in range(32): a(f"v_mov_b32 v{ACC+r}, 0")
    a(f"s_waitcnt vmcnt({3*D-4})")
    a("s_barrier")
    for nb in range(4): a(reads(nb, 0))
    pf.stamp()
    a("L2_loop:")
    for s in range(D):
        if s == 32 % D:
            a(f"""s_cmp_lg_u32 s43, s51
            s_cbranch_scc1 L2_nosave
            s_nop 7""")
            a(f"s_lshl_b32 s48, s38, 12")
            a(f"s_add_u32 s48, s48, {XRA}")
            a(f"v_lshlrev_b32 v{vtmp}, 3, v{vL}")
            a(f"v_add_u32 v{vtmp}, s48, v{vtmp}")
            for mb in range(2):
                for nb in range(4):
                    r = acc(mb, nb)
                    a(f"v_cvt_pk_bf16_f32 v{r}, v{r}, v{r+1}")
                    a(f"v_cvt_pk_bf16_f32 v{r+1}, v{r+2}, v{r+3}")
                    a(f"ds_write_b64 v{vtmp}, v[{r}:{r+1}] offset:{(mb*4+nb)*512}")
            a("s_waitcnt lgkmcnt(0)")
            for r in range(32): a(f"v_mov_b32 v{ACC+r}, 0")
            a("s_nop 1")
            a("L2_nosave:")
        a(f"s_waitcnt vmcnt({3*D-7})")
        a("s_barrier")
        if s == 33 % D:
            a(f"""s_cmp_eq_u32 s43, s50
            s_cselect_b32 s20, s6, s20
            s_cselect_b32 s21, s7, s21
            s_cselect_b32 s22, s52, s22
            s_cselect_b32 s42, 0, s42""")
        lg = loads(s + D - 1)
        sl = s
        for nb in range(4):
            a(f"s_waitcnt lgkmcnt(6)")
            for mb in range(2):
                ar = AR + sl * 8 + mb * 4
                a(f"v_mfma_f32_16x16x32_bf16 v[{acc(mb,nb)}:{acc(mb,nb)+3}], v[{BF+nb*4}:{BF+nb*4+3}], v[{ar}:{ar+3}], v[{acc(mb,nb)}:{acc(mb,nb)+3}]")
            a(reads(nb, (s + 1) % D))
            if nb < 3: a(lg[nb])
    a(f"""
    s_add_u32 s43, s43, 1
    s_cmp_lt_u32 s43, {72//D}
    s_cbranch_scc1 L2_loop
    """)
    pf.stamp()
    a(f"""
    s_lshl_b32 s48, s38, 13
    s_xor_b32 s49, s37, 1
    s_lshl_b32 s49, s49, 12
    s_add_u32 s49, s49, s48
    s_add_u32 s49, s49, {XRB}
    v_lshlrev_b32 v{vtmp}, 4, v{vL}
    v_add_u32 v{vtmp+1}, s49, v{vtmp}
    s_lshl_b32 s49, s37, 12
    s_add_u32 s49, s49, s48
    s_add_u32 s49, s49, {XRB}
    v_add_u32 v{vtmp+2}, s49, v{vtmp}
    """)
    for nb in range(4):
        a(f"ds_write_b128 v{vtmp+1}, v[{acc(1,nb)}:{acc(1,nb)+3}] offset:{nb*1024}")
    a(f"""
    s_lshl_b32 s48, s38, 12
    s_lshl_b32 s49, s37, 11
    s_add_u32 s48, s48, s49
    s_add_u32 s48, s48, {XRA}
    v_lshlrev_b32 v{vtmp}, 3, v{vL}
    v_add_u32 v{vtmp}, s48, v{vtmp}
    s_mov_b32 s53, 0xffff0000
    s_waitcnt vmcnt(0) lgkmcnt(0)
    s_barrier
    """)
    P = AR
    PA = AR + 16
    T = AR + 24
    for nb in range(4):
        a(f"ds_read_b128 v[{P+nb*4}:{P+nb*4+3}], v{vtmp+2} offset:{nb*1024}")
        a(f"ds_read_b64 v[{PA+nb*2}:{PA+nb*2+1}], v{vtmp} offset:{nb*512}")
    a("s_waitcnt vmcnt(0) lgkmcnt(0)")
    def unpack(dst, src):
        a(f"v_lshlrev_b32 v{dst}, 16, v{src}")
        a(f"v_and_b32 v{dst+1}, s53, v{src}")
        a(f"v_lshlrev_b32 v{dst+2}, 16, v{src+1}")
        a(f"v_and_b32 v{dst+3}, s53, v{src+1}")
    def add4(dst, x, y):
        a(f"v_pk_add_f32 v[{dst}:{dst+1}], v[{x}:{x+1}], v[{y}:{y+1}]")
        a(f"v_pk_add_f32 v[{dst+2}:{dst+3}], v[{x+2}:{x+3}], v[{y+2}:{y+3}]")
    def pack(dst, src):
        a(f"v_cvt_pk_bf16_f32 v{dst}, v{src}, v{src+1}")
        a(f"v_cvt_pk_bf16_f32 v{dst+1}, v{src+2}, v{src+3}")
    R = BF
    for nb in range(4):
        t0, t1, t2 = T, T + 4, T + 8
        unpack(t0, vX + 2 * nb); unpack(t1, PA + 2 * nb); add4(t0, t0, t1); pack(t2, t0); unpack(t0, t2)
        add4(t1, acc(0, nb), P + nb * 4); pack(t2, t1); unpack(t1, t2)
        unpack(T + 12, vB2 + 2 * nb); add4(t1, t1, T + 12); pack(t2, t1); unpack(t1, t2)
        add4(t0, t0, t1); pack(R + 2 * nb, t0)
    for p in range(2):
        r = R + 4 * p
        a(f"v_permlane32_swap_b32 v{r}, v{r+2}")
        a(f"v_permlane32_swap_b32 v{r+1}, v{r+3}")
        a(f"v_permlane16_swap_b32 v{r}, v{r+2}")
        a(f"v_permlane16_swap_b32 v{r+1}, v{r+3}")
        a(f"buffer_store_dwordx4 v[{r}:{r+3}], v{vO}, s[28:31], 0 offen offset:{64*p}")
    if PROF:
        a("s_waitcnt vmcnt(0)")
        pf.stamp(); pf.stamp(True)
        a(srd(56, 's8', 's9', WS_RANGE))
        pf.flush(56, 0, 36, 48)
    a("L2_end:")
    a("s_endpgm")
    return a.lines(), NV, 100 if PROF else 56, LDS

def gen_k1():
    a = Asm()
    D = 8
    SLOT = 13312
    slotbase = [k * SLOT for k in range(4)] + [65536 + k * SLOT for k in range(4)]
    WPHI = 65536 + 4 * SLOT
    LDS = WPHI + 2048
    KVF = 65536
    ACC = 152; BF = 100; AR = 36
    acc = lambda mb, nb: ACC + (mb * 13 + nb) * 4
    vL, vA, vD1, vD2 = 1, 2, 3, 4
    vQe, vQo, vH = 5, 6, 7
    vtmp = 12
    vTW, vTR, vA2, vKV = 20, 21, 22, 23
    vB1o = 24
    NV = 256
    for n in range(448):
        assert (n * 5462) >> 16 == n // 12 and (n * 4682) >> 16 == n // 14
    pf = Prof(a, 64, 1)
    a(f"""
    s_cmp_ge_u32 s2, 256
    s_cbranch_scc1 L1_end
    """)
    pf.stamp(True); pf.stamp()
    a(f"""
    s_load_dwordx2 s[4:5], s[0:1], 8       ; wqkv
    s_load_dwordx2 s[6:7], s[0:1], 40      ; w1
    s_load_dwordx2 s[8:9], s[0:1], 88      ; ws
    s_load_dwordx2 s[10:11], s[0:1], 16    ; wphi
    s_load_dwordx2 s[12:13], s[0:1], 48    ; b1
    v_lshrrev_b32 v{vtmp}, 6, v0
    v_and_b32 v{vL}, 63, v0
    v_readfirstlane_b32 s36, v{vtmp}       ; wave
    s_and_b32 s46, s2, 7
    s_lshr_b32 s47, s2, 3
    s_lshl_b32 s37, s46, 2
    s_lshr_b32 s48, s47, 3
    s_add_u32 s37, s37, s48                ; head
    s_and_b32 s38, s47, 7                  ; mtile
    v_lshlrev_b32 v{vA}, 4, v{vL}
    s_lshl_b32 s48, s36, 6
    v_add_u32 v{vtmp}, s48, v{vL}                 ; ci
    v_mul_u32_u24 v{vtmp+1}, 5462, v{vtmp}
    v_lshrrev_b32 v{vtmp+1}, 16, v{vtmp+1}        ; row
    v_mul_u32_u24 v{vtmp+2}, 12, v{vtmp+1}
    v_sub_u32 v{vtmp+2}, v{vtmp}, v{vtmp+2}       ; pos
    v_bfe_u32 v{vtmp+3}, v{vtmp+1}, 2, 1
    v_lshlrev_b32 v{vtmp+3}, 1, v{vtmp+3}
    v_xor_b32 v{vtmp+2}, v{vtmp+2}, v{vtmp+3}     ; cc
    v_mul_u32_u24 v{vD1}, 6144, v{vtmp+1}
    v_lshrrev_b32 v{vtmp+3}, 2, v{vtmp+2}
    v_lshl_add_u32 v{vD1}, v{vtmp+3}, 11, v{vD1}
    v_and_b32 v{vtmp+3}, 3, v{vtmp+2}
    v_lshl_add_u32 v{vD1}, v{vtmp+3}, 4, v{vD1}
    s_lshl_b32 s48, s37, 6
    v_add_u32 v{vD1}, s48, v{vD1}
    """)
    def bh_off(dst, ci_s):
        a(f"""
        v_add_u32 v{vtmp}, {ci_s}, v{vL}
        v_mul_u32_u24 v{vtmp+1}, 4682, v{vtmp}
        v_lshrrev_b32 v{vtmp+1}, 16, v{vtmp+1}        ; row
        v_mul_u32_u24 v{vtmp+2}, 14, v{vtmp+1}
        v_sub_u32 v{vtmp+2}, v{vtmp}, v{vtmp+2}       ; cc
        v_mul_u32_u24 v{dst}, 7168, v{vtmp+1}
        v_lshl_add_u32 v{dst}, v{vtmp+2}, 4, v{dst}
        v_mov_b32 v{vtmp+3}, s49
        v_mov_b32 v{vtmp+4}, s50
        v_cmp_gt_u32 vcc, 12, v{vtmp+2}
        v_cndmask_b32 v{vtmp+3}, v{vtmp+4}, v{vtmp+3}, vcc
        v_add_u32 v{dst}, v{dst}, v{vtmp+3}
        """)
    a(f"""
    s_mul_i32 s49, s37, 192
    s_lshl_b32 s50, s37, 5
    s_add_u32 s50, s50, {6144-192}
    s_add_u32 s48, s36, 2
    s_lshl_b32 s48, s48, 6
    """)
    bh_off(vD2, 's48')
    a(f"""
    s_cmp_lt_u32 s36, 6
    s_cbranch_scc1 L1_d1ok
    s_sub_u32 s48, s36, 6
    s_lshl_b32 s48, s48, 6
    """)
    bh_off(vD1, 's48')
    a(f"""
    L1_d1ok:
    v_lshrrev_b32 v{vtmp}, 2, v{vL}
    v_and_b32 v{vtmp+1}, 3, v{vL}
    v_lshlrev_b32 v{vtmp+1}, 3, v{vtmp+1}         ; (l&3)*8
    v_mul_u32_u24 v{vH}, 224, v{vtmp}
    v_add_u32 v{vH}, v{vH}, v{vtmp+1}
    v_add_u32 v{vH}, 6144, v{vH}
    v_mul_u32_u24 v{vQe}, 192, v{vtmp}
    v_add_u32 v{vQe}, v{vQe}, v{vtmp+1}
    v_bfe_u32 v{vtmp+2}, v{vL}, 4, 1
    v_lshlrev_b32 v{vtmp+2}, 5, v{vtmp+2}
    v_sub_u32 v{vQo}, v{vQe}, v{vtmp+2}
    v_add_u32 v{vQe}, v{vQe}, v{vtmp+2}
    v_add_u32 v{vQe+3}, 0x10000, v{vQe}
    v_add_u32 v{vQo+3}, 0x10000, v{vQo}
    v_add_u32 v{vH+3}, 0x10000, v{vH}
    """)
    pf.stamp()
    a(f"""
    s_waitcnt lgkmcnt(0)
    s_lshl_b32 s39, s38, 3
    s_add_u32 s39, s39, s36                ; m32blk
    s_lshl_b32 s48, s39, 16
    s_add_u32 s16, s8, s48
    s_addc_u32 s17, s9, 0
    s_mov_b32 s18, 65536
    s_mov_b32 s19, 0x20000
    ; SRD 1
    s_cmp_lt_u32 s36, 6
    s_cselect_b32 s20, s4, s6
    s_cselect_b32 s21, s5, s7
    s_mov_b32 s22, {1024*7168}
    s_cselect_b32 s22, {1024*6144}, s22
    s_mov_b32 s23, 0x20000
    s_mov_b32 s45, {32*7168}
    s_cselect_b32 s45, {32*6144}, s45
    """)
    a(srd(24, 's6', 's7', 1024 * 7168))
    a(srd(28, 's8', 's9', WS_RANGE))
    a(srd(32, 's10', 's11', 65536))
    a(srd(52, 's12', 's13', 7168))
    a(f"""
    s_lshl_b32 s40, s36, 10                ; m0 base 1
    s_add_u32 s44, s40, 8192               ; m0 base 2
    s_mov_b32 s41, 0                       ; A soffset
    s_mov_b32 s42, 0                       ; D1 soffset
    s_mov_b32 s43, 0                       ; D2 soffset
    s_mov_b32 s51, 0
    s_cmp_lt_u32 s36, 2
    s_cbranch_scc0 L1_nowphi
    s_add_u32 m0, s40, {WPHI}
    s_lshl_b32 s48, s37, 11
    s_add_u32 s48, s48, s40
    buffer_load_dwordx4 v{vA}, s[32:35], s48 offen lds
    L1_nowphi:
    s_cmp_lt_u32 s36, 5
    s_cselect_b64 vcc, -1, 0
    """)
    lab = [0]
    def loads(u):
        sl = u % D
        lab[0] += 1
        g1 = f"""s_add_u32 m0, s40, {slotbase[sl]}
        buffer_load_dwordx4 v{vD1}, s[20:23], s42 offen lds
        s_add_u32 s42, s42, s45"""
        g2 = f"""s_cbranch_vccz L1_sk{lab[0]}
        s_add_u32 m0, s44, {slotbase[sl]}
        buffer_load_dwordx4 v{vD2}, s[24:27], s43 offen lds
        s_add_u32 s43, s43, {32*7168}
        L1_sk{lab[0]}:"""
        o = (u & 1) * 2048
        g3 = f"buffer_load_dwordx4 v[{AR+sl*8}:{AR+sl*8+3}], v{vA}, s[16:19], s41 offen offset:{o}"
        g4 = f"buffer_load_dwordx4 v[{AR+sl*8+4}:{AR+sl*8+7}], v{vA}, s[16:19], s41 offen offset:{o+1024}"
        if u & 1: g4 += "\ns_add_u32 s41, s41, 4096"
        return [g1, g2, g3, g4]
    def reads(nb, sl):
        up = 3 if sl >= 4 else 0
        base = slotbase[sl] - (65536 if sl >= 4 else 0)
        if nb < 6:
            reg = (vQo if nb & 1 else vQe) + up; o0 = base + 32 * nb; o1 = o0 + 3072
        else:
            reg = vH + up; o0 = base + 32 * (nb - 6); o1 = o0 + 3584
        return f"""ds_read_b64_tr_b16 v[{BF+nb*4}:{BF+nb*4+1}], v{reg} offset:{o0}
        ds_read_b64_tr_b16 v[{BF+nb*4+2}:{BF+nb*4+3}], v{reg} offset:{o1}"""
    for u in range(D - 1):
        for g in loads(u): a(g)
    pf.stamp()
    for r in range(104): a(f"v_mov_b32 v{ACC+r}, 0")
    pf.stamp()
    a(f"s_waitcnt vmcnt({3*D-4})")
    pf.stamp()
    a("s_barrier")
    for nb in range(13): a(reads(nb, 0))
    pf.stamp()
    a("L1_loop:")
    for s in range(D):
        a(f"s_waitcnt vmcnt({3*D-7})")
        a("s_barrier")
        lg = loads(s + D - 1)
        for nb in range(13):
            if nb == 0: a("s_waitcnt lgkmcnt(8)")
            if nb == 9: a("s_waitcnt lgkmcnt(15)")
            for mb in range(2):
                ar = AR + s * 8 + mb * 4
                a(f"v_mfma_f32_16x16x32_bf16 v[{acc(mb,nb)}:{acc(mb,nb)+3}], v[{BF+nb*4}:{BF+nb*4+3}], v[{ar}:{ar+3}], v[{acc(mb,nb)}:{acc(mb,nb)+3}]")
            a(reads(nb, (s + 1) % D))
            if nb in (1, 3, 5, 7): a(lg[(nb - 1) // 2])
    a(f"""
    s_add_u32 s51, s51, 1
    s_cmp_lt_u32 s51, 4
    s_cbranch_scc1 L1_loop
    """)
    pf.stamp()
    WP = 36
    B1 = 44
    PK = 60
    E = 76
    PH = 108
    KF = 124
    ST = 132
    a(f"""
    s_mov_b32 s56, 0xffff0000
    s_mov_b32 s57, {LOG2E}
    v_lshrrev_b32 v{vtmp}, 4, v{vL}               ; g
    v_lshlrev_b32 v{vB1o}, 3, v{vtmp}
    v_and_b32 v{vtmp+1}, 15, v{vL}                ; m
    s_lshl_b32 s48, s36, 5
    v_add_u32 v{vTW}, s48, v{vtmp+1}
    v_lshlrev_b32 v{vTW}, 8, v{vTW}
    v_and_b32 v{vtmp+2}, 7, v{vtmp+1}
    v_lshl_add_u32 v{vTW}, v{vtmp+2}, 5, v{vTW}
    v_lshrrev_b32 v{vtmp+2}, 2, v{vtmp+1}
    v_xor_b32 v{vtmp+2}, v{vtmp+2}, v{vtmp}
    v_lshl_add_u32 v{vTW}, v{vtmp+2}, 3, v{vTW}
    v_lshrrev_b32 v{vtmp+2}, 2, v{vL}
    v_lshlrev_b32 v{vTR}, 8, v{vtmp+2}
    v_and_b32 v{vtmp+2}, 7, v{vtmp+2}
    v_lshl_add_u32 v{vTR}, v{vtmp+2}, 5, v{vTR}
    v_and_b32 v{vtmp+2}, 3, v{vL}
    v_xor_b32 v{vtmp+2}, v{vtmp+2}, v{vtmp}
    v_lshl_add_u32 v{vTR}, v{vtmp+2}, 3, v{vTR}
    v_lshrrev_b32 v{vtmp+2}, 2, v{vL}
    v_lshlrev_b32 v{vtmp+2}, 6, v{vtmp+2}
    v_and_b32 v{vtmp+3}, 3, v{vL}
    v_lshl_add_u32 v{vtmp+2}, v{vtmp+3}, 3, v{vtmp+2}
    v_add_u32 v{vtmp+2}, {WPHI}, v{vtmp+2}
    s_waitcnt vmcnt(0) lgkmcnt(0)
    s_barrier
    """)
    for fb in range(2):
        for jj in range(2):
            a(f"ds_read_b64_tr_b16 v[{WP+fb*4+jj*2}:{WP+fb*4+jj*2+1}], v{vtmp+2} offset:{fb*32+jj*1024}")
    a("s_mul_i32 s48, s37, 192")
    for i in range(6):
        a(f"buffer_load_dwordx2 v[{B1+2*i}:{B1+2*i+1}], v{vB1o}, s[52:55], s48 offen offset:{32*i}")
    a("s_lshl_b32 s48, s37, 5")
    a("s_add_u32 s48, s48, 6144")
    a(f"buffer_load_dwordx2 v[{B1+12}:{B1+13}], v{vB1o}, s[52:55], s48 offen")

    def packfrag(dst, r0, r1):
        a(f"v_cvt_pk_bf16_f32 v{dst}, v{r0}, v{r0+1}")
        a(f"v_cvt_pk_bf16_f32 v{dst+1}, v{r0+2}, v{r0+3}")
        a(f"v_cvt_pk_bf16_f32 v{dst+2}, v{r1}, v{r1+1}")
        a(f"v_cvt_pk_bf16_f32 v{dst+3}, v{r1+2}, v{r1+3}")
    def red4(op, q, t):
        A_, B_, C_, D_ = q
        a(f"v_permlane32_swap_b32 v{A_}, v{B_}")
        a(f"v_permlane32_swap_b32 v{C_}, v{D_}")
        a(f"{op} v{A_}, v{A_}, v{B_}")
        a(f"{op} v{C_}, v{C_}, v{D_}")
        a(f"v_permlane16_swap_b32 v{A_}, v{C_}")
        a(f"{op} v{A_}, v{A_}, v{C_}")
        a(f"v_mov_b32 v{C_}, v{A_}")
        a(f"v_permlane16_swap_b32 v{A_}, v{C_}")
        a(f"v_mov_b32 v{B_}, v{A_}")
        a(f"v_mov_b32 v{D_}, v{C_}")
        a(f"v_permlane32_swap_b32 v{A_}, v{B_}")
        a(f"v_permlane32_swap_b32 v{C_}, v{D_}")
    def feature_map(nb0):
        for mb in range(2): packfrag(KF + mb * 4, acc(mb, nb0), acc(mb, nb0 + 1))
        for mb in range(2):
            for fb in range(2):
                r = PK + (mb * 2 + fb) * 4
                a(f"v_mfma_f32_16x16x32_bf16 v[{r}:{r+3}], v[{WP+fb*4}:{WP+fb*4+3}], v[{KF+mb*4}:{KF+mb*4+3}], 0")
        for k in range(8):
            r = PK + 2 * k
            a(f"v_cvt_pk_bf16_f32 v{E+k}, v{r}, v{r+1}")
        for k in range(8):
            r = PK + 2 * k
            a(f"v_lshlrev_b32 v{r}, 16, v{E+k}")
            a(f"v_and_b32 v{r+1}, s56, v{E+k}")
        for mb in range(2):
            r = PK + mb * 8
            mx, mn = ST + 2 * mb, ST + 2 * mb + 1
            a(f"v_max3_f32 v{mx}, v{r}, v{r+1}, v{r+2}")
            a(f"v_min3_f32 v{mn}, v{r}, v{r+1}, v{r+2}")
            a(f"v_max3_f32 v{mx}, v{mx}, v{r+3}, v{r+4}")
            a(f"v_min3_f32 v{mn}, v{mn}, v{r+3}, v{r+4}")
            a(f"v_max3_f32 v{mx}, v{mx}, v{r+5}, v{r+6}")
            a(f"v_min3_f32 v{mn}, v{mn}, v{r+5}, v{r+6}")
            a(f"v_max_f32 v{mx}, v{mx}, v{r+7}")
            a(f"v_min_f32 v{mn}, v{mn}, v{r+7}")
            a(f"v_sub_f32 v{mn}, 0, v{mn}")
        red4("v_max_f32", [ST, ST + 1, ST + 2, ST + 3], None)
        for k in range(4): a(f"v_mul_f32 v{ST+k}, s57, v{ST+k}")
        for mb in range(2):
            for sg in range(2):
                for k in range(8):
                    e = E + (mb * 2 + sg) * 8 + k
                    p = PK + mb * 8 + k
                    neg = '-' if sg else ''
                    a(f"v_fma_f32 v{e}, {neg}v{p}, s57, -v{ST+2*mb+sg}")
                for k in range(8):
                    e = E + (mb * 2 + sg) * 8 + k
                    a(f"v_exp_f32 v{e}, v{e}")
        for q in range(4):
            e = E + q * 8; s_ = ST + 4 + q
            a(f"v_pk_add_f32 v[{PK}:{PK+1}], v[{e}:{e+1}], v[{e+2}:{e+3}]")
            a(f"v_pk_add_f32 v[{PK+2}:{PK+3}], v[{e+4}:{e+5}], v[{e+6}:{e+7}]")
            a(f"v_pk_add_f32 v[{PK}:{PK+1}], v[{PK}:{PK+1}], v[{PK+2}:{PK+3}]")
            a(f"v_add_f32 v{s_}, v{PK}, v{PK+1}")
        red4("v_add_f32", [ST + 4, ST + 5, ST + 6, ST + 7], None)
        for q in range(4): a(f"v_rcp_f32 v{ST+4+q}, v{ST+4+q}")
        for q in range(4):
            e = E + q * 8
            for k in range(8): a(f"v_mul_f32 v{e+k}, v{ST+4+q}, v{e+k}")
            for k in range(4): a(f"v_cvt_pk_bf16_f32 v{PH+q*4+k}, v{e+2*k}, v{e+2*k+1}")
    a("s_waitcnt lgkmcnt(0)")
    pf.stamp()
    feature_map(2)
    pf.stamp()
    for mb in range(2): packfrag(KF + mb * 4, acc(mb, 4), acc(mb, 5))
    for Q in range(6):
        a(f"v_xor_b32 v{vtmp}, {Q<<5}, v{vTW}")
        for mb in range(2):
            src = PH + (mb * 2 + (Q >> 1)) * 4 + (Q & 1) * 2 if Q < 4 else KF + mb * 4 + (Q - 4) * 2
            a(f"ds_write_b64 v{vtmp}, v[{src}:{src+1}] offset:{mb*4096}")
    a(f"""
    s_and_b32 s48, s36, 3
    s_lshl_b32 s48, s48, 5
    v_xor_b32 v{vtmp}, s48, v{vTR}
    s_lshr_b32 s48, s36, 2
    s_add_u32 s48, s48, 4
    s_lshl_b32 s48, s48, 5
    v_xor_b32 v{vtmp+1}, s48, v{vTR}        ; v cols Q = 4 + (w>>2)
    v_mov_b32 v{ST}, 0x3f803f80
    v_mov_b32 v{ST+1}, 0x3f803f80
    v_mov_b32 v{ST+2}, 0x3f803f80
    v_mov_b32 v{ST+3}, 0x3f803f80
    s_waitcnt lgkmcnt(0)
    s_barrier
    """)
    FA = 60; FB_ = 92
    KVT = 124; ZT = 128
    for ks in range(8):
        for jj in range(2):
            a(f"ds_read_b64_tr_b16 v[{FA+ks*4+jj*2}:{FA+ks*4+jj*2+1}], v{vtmp} offset:{ks*8192+jj*4096}")
        for jj in range(2):
            a(f"ds_read_b64_tr_b16 v[{FB_+ks*4+jj*2}:{FB_+ks*4+jj*2+1}], v{vtmp+1} offset:{ks*8192+jj*4096}")
        if ks >= 2:
            k2 = ks - 2
            a("s_waitcnt lgkmcnt(8)")
            c = '0' if k2 == 0 else f"v[{KVT}:{KVT+3}]"
            a(f"v_mfma_f32_16x16x32_bf16 v[{KVT}:{KVT+3}], v[{FA+k2*4}:{FA+k2*4+3}], v[{FB_+k2*4}:{FB_+k2*4+3}], {c}")
            c = '0' if k2 == 0 else f"v[{ZT}:{ZT+3}]"
            a(f"v_mfma_f32_16x16x32_bf16 v[{ZT}:{ZT+3}], v[{FA+k2*4}:{FA+k2*4+3}], v[{ST}:{ST+3}], {c}")
    for k2 in (6, 7):
        a(f"s_waitcnt lgkmcnt({4 if k2 == 6 else 0})")
        a(f"v_mfma_f32_16x16x32_bf16 v[{KVT}:{KVT+3}], v[{FA+k2*4}:{FA+k2*4+3}], v[{FB_+k2*4}:{FB_+k2*4+3}], v[{KVT}:{KVT+3}]")
        a(f"v_mfma_f32_16x16x32_bf16 v[{ZT}:{ZT+3}], v[{FA+k2*4}:{FA+k2*4+3}], v[{ST}:{ST+3}], v[{ZT}:{ZT+3}]")
    a(f"""
    s_lshl_b32 s48, s37, 3
    s_add_u32 s48, s48, s38
    s_mul_i32 s48, s48, 12288
    s_add_u32 s48, s48, {KVP_OFF}
    s_add_u32 s48, s48, s40                ; + w*1024
    buffer_store_dwordx4 v[{KVT}:{KVT+3}], v{vA}, s[28:31], s48 offen sc1
    s_cmp_lt_u32 s36, 4
    s_cbranch_scc0 L1_noz
    s_add_u32 s48, s48, 8192
    buffer_store_dwordx4 v[{ZT}:{ZT+3}], v{vA}, s[28:31], s48 offen sc1
    L1_noz:
    s_waitcnt vmcnt(0)
    s_barrier
    s_lshl_b32 s58, s37, 7
    s_add_u32 s58, s58, {FLAG_OFF}
    s_cmp_eq_u32 s36, 0
    s_cbranch_scc0 L1_noflag
    s_lshl_b32 s48, s38, 2
    s_add_u32 s48, s48, s58
    v_mov_b32 v{vtmp}, 0
    v_mov_b32 v{vtmp+1}, 1
    s_mov_b64 exec, 1
    buffer_store_dword v{vtmp+1}, v{vtmp}, s[28:31], s48 offen sc1
    s_mov_b64 exec, -1
    L1_noflag:
    s_mul_i32 s59, s39, 294912
    s_add_u32 s59, s59, {A2_OFF}
    """)
    pf.stamp()
    BI = 60
    HT = 64
    HP = 76
    for i in range(7):
        nb = 6 + i
        a(f"v_lshlrev_b32 v{BI}, 16, v{B1+2*i}")
        a(f"v_and_b32 v{BI+1}, s56, v{B1+2*i}")
        a(f"v_lshlrev_b32 v{BI+2}, 16, v{B1+2*i+1}")
        a(f"v_and_b32 v{BI+3}, s56, v{B1+2*i+1}")
        for mb in range(2):
            r = acc(mb, nb); t = HT + mb * 2
            for hh in range(2):
                rr = r + 2 * hh; tt = t + hh
                a(f"v_cvt_pk_bf16_f32 v{tt}, v{rr}, v{rr+1}")
                a(f"v_lshlrev_b32 v{rr}, 16, v{tt}")
                a(f"v_and_b32 v{rr+1}, s56, v{tt}")
                a(f"v_pk_add_f32 v[{rr}:{rr+1}], v[{rr}:{rr+1}], v[{BI+2*hh}:{BI+2*hh+1}]")
                a(f"v_max_f32 v{rr}, 0, v{rr}")
                a(f"v_max_f32 v{rr+1}, 0, v{rr+1}")
                a(f"v_cvt_pk_bf16_f32 v{tt}, v{rr}, v{rr+1}")
                a(f"v_lshlrev_b32 v{rr}, 16, v{tt}")
                a(f"v_and_b32 v{rr+1}, s56, v{tt}")
                a(f"v_pk_mul_f32 v[{rr}:{rr+1}], v[{rr}:{rr+1}], v[{rr}:{rr+1}]")
                a(f"v_cvt_pk_bf16_f32 v{HP+mb*16+i*2+hh}, v{rr}, v{rr+1}")
        if i in (1, 3, 5):
            c = i // 2
            if c == 0:
                a(f"s_mul_i32 s48, s37, {3*2048}")
                a(f"s_add_u32 s48, s48, s59")
                a(f"s_add_u32 s48, s48, {32*2048}")
            if c == 2:
                a(f"s_add_u32 s48, s48, 4096")
            for mb in range(2):
                r = HP + mb * 16 + c * 4
                a(f"buffer_store_dwordx4 v[{r}:{r+3}], v{vA}, s[28:31], s48 offen offset:{(c&1)*2048+mb*1024}")
    a(f"""
    s_lshr_b32 s48, s37, 1
    s_lshl_b32 s48, s48, 11
    s_add_u32 s48, s48, s59
    s_add_u32 s48, s48, {128*2048}
    s_and_b32 s49, s37, 1
    s_lshl_b32 s49, s49, 3
    s_add_u32 s48, s48, s49
    """)
    for mb in range(2):
        r = HP + mb * 16 + 12
        a(f"buffer_store_dwordx2 v[{r}:{r+1}], v{vA}, s[28:31], s48 offen offset:{mb*1024}")
    a("s_waitcnt vmcnt(0)")
    pf.stamp()
    feature_map(0)
    pf.stamp()
    a(f"""
    s_cmp_eq_u32 s36, 0
    s_cbranch_scc0 L1_nopoll
    v_and_b32 v{vtmp}, 7, v{vL}
    v_lshlrev_b32 v{vtmp}, 2, v{vtmp}
    s_mov_b32 s49, 0
    L1_poll:
    buffer_load_dword v{vtmp+1}, v{vtmp}, s[28:31], s58 offen sc1
    s_waitcnt vmcnt(0)
    v_cmp_ne_u32 vcc, 1, v{vtmp+1}
    s_add_u32 s49, s49, 1
    s_cmp_eq_u64 vcc, 0
    s_cbranch_scc1 L1_nopoll
    s_sleep 2
    s_cmp_lt_u32 s49, 0x40000
    s_cbranch_scc1 L1_poll
    L1_nopoll:
    s_barrier
    s_mul_i32 s48, s37, {8*12288}
    s_add_u32 s48, s48, {KVP_OFF}
    s_add_u32 s48, s48, s40
    """)
    pf.stamp()
    PL = 60
    ZL = 152
    for mt in range(8):
        a(f"buffer_load_dwordx4 v[{PL+mt*4}:{PL+mt*4+3}], v{vA}, s[28:31], s48 offen sc1")
        a(f"s_add_u32 s48, s48, 12288")
    a(f"""
    s_lshr_b32 s49, s36, 1
    s_lshl_b32 s49, s49, 10
    s_and_b32 s50, s36, 1
    s_lshl_b32 s50, s50, 3
    s_add_u32 s49, s49, s50
    s_add_u32 s49, s49, {KVF}
    v_add_u32 v{vtmp}, s49, v{vA}
    s_cmp_lt_u32 s36, 4
    s_cbranch_scc0 L1_noz2
    s_sub_u32 s48, s48, {8*12288-8192}
    """)
    for mt in range(8):
        a(f"buffer_load_dwordx4 v[{ZL+mt*4}:{ZL+mt*4+3}], v{vA}, s[28:31], s48 offen sc1")
        a(f"s_add_u32 s48, s48, 12288")
    def sum8(P):
        for mt in range(1, 8):
            a(f"v_pk_add_f32 v[{P}:{P+1}], v[{P}:{P+1}], v[{P+mt*4}:{P+mt*4+1}]")
            a(f"v_pk_add_f32 v[{P+2}:{P+3}], v[{P+2}:{P+3}], v[{P+mt*4+2}:{P+mt*4+3}]")
        a(f"v_cvt_pk_bf16_f32 v{P}, v{P}, v{P+1}")
        a(f"v_cvt_pk_bf16_f32 v{P+1}, v{P+2}, v{P+3}")
    a("s_waitcnt vmcnt(0)")
    sum8(ZL)
    a(f"ds_write_b64 v{vtmp}, v[{ZL}:{ZL+1}] offset:4096")
    a("L1_noz2:")
    a("s_waitcnt vmcnt(0)")
    sum8(PL)
    a(f"ds_write_b64 v{vtmp}, v[{PL}:{PL+1}]")
    a(f"v_add_u32 v{vtmp+1}, {KVF}, v{vA}")
    a("s_waitcnt lgkmcnt(0)")
    a("s_barrier")
    KV = 60
    for t in range(6):
        a(f"ds_read_b128 v[{KV+t*4}:{KV+t*4+3}], v{vtmp+1} offset:{t*1024}")
    a("s_waitcnt lgkmcnt(0)")
    O = 152
    for mb in range(2):
        for db in range(3):
            r = O + (mb * 3 + db) * 4
            a(f"v_mfma_f32_16x16x32_bf16 v[{r}:{r+3}], v[{KV+db*8}:{KV+db*8+3}], v[{PH+mb*8}:{PH+mb*8+3}], 0")
    for mb in range(2):
        for db in range(3):
            r = O + (mb * 3 + db) * 4
            a(f"v_mfma_f32_16x16x32_bf16 v[{r}:{r+3}], v[{KV+db*8+4}:{KV+db*8+7}], v[{PH+mb*8+4}:{PH+mb*8+7}], v[{r}:{r+3}]")
    a(f"s_lshl_b32 s48, s37, 11")
    a(f"s_add_u32 s48, s48, s59")
    for mb in range(2):
        dn = O + (mb * 3 + 2) * 4
        a(f"v_cvt_pk_bf16_f32 v{dn}, v{dn}, v{dn}")
        a(f"v_lshlrev_b32 v{dn}, 16, v{dn}")
        a(f"v_add_f32 v{dn}, 0x358637bd, v{dn}")
        a(f"v_cvt_pk_bf16_f32 v{dn}, v{dn}, v{dn}")
        a(f"v_lshlrev_b32 v{dn}, 16, v{dn}")
        a(f"v_rcp_f32 v{dn}, v{dn}")
        r = O + mb * 12
        t = 92 + mb * 4
        for k in range(4):
            a(f"v_cvt_pk_bf16_f32 v{t+k}, v{r+2*k}, v{r+2*k+1}")
            a(f"v_lshlrev_b32 v{r+2*k}, 16, v{t+k}")
            a(f"v_and_b32 v{r+2*k+1}, s56, v{t+k}")
            a(f"v_mul_f32 v{r+2*k}, v{dn}, v{r+2*k}")
            a(f"v_mul_f32 v{r+2*k+1}, v{dn}, v{r+2*k+1}")
            a(f"v_cvt_pk_bf16_f32 v{t+k}, v{r+2*k}, v{r+2*k+1}")
        a(f"buffer_store_dwordx4 v[{t}:{t+3}], v{vA}, s[28:31], s48 offen offset:{mb*1024}")
    if PROF:
        a("s_waitcnt vmcnt(0)")
        pf.stamp(); pf.stamp(True)
        pf.flush(28, 12, 36, 48)
    a("L1_end:")
    a("s_endpgm")
    return a.lines(), NV, 100 if PROF else 64, LDS

HEADER = """; parallel_sum( hedgehog linear attention , squared-relu MLP ) on layernorm(x), + residual
"""

def build(path, k2D=8):
    k0, v0, s0 = gen_k0()
    k1, v1, s1, l1 = gen_k1()
    k2, v2, s2, l2 = gen_k2(k2D)
    t = [HEADER.rstrip(),
         "; @launch kernel=ln_kernel grid=(256,1,1) block=(256,1,1) lds=0",
         f"; @launch kernel=g1_kernel grid=(256,1,1) block=(512,1,1) lds={l1}",
         f"; @launch kernel=g2_kernel grid=(256,1,1) block=(512,1,1) lds={l2}",
         '.amdgcn_target "amdgcn-amd-amdhsa--gfx950"', '.text']
    for name, body in (("ln_kernel", k0), ("g1_kernel", k1), ("g2_kernel", k2)):
        rep = []
        body = fix_hazards(body, rep)
        body = [b.replace(' NEG', ' neg_lo:[0,1] neg_hi:[0,1]') for b in body]
        t += kernel_text(name, body, 0, 0)
    t += ['.section .rodata,"a"']
    t += kd_text("ln_kernel", v0, s0) + kd_text("g1_kernel", v1, s1) + kd_text("g2_kernel", v2, s2)
    open(path, 'w').write('\n'.join(t) + '\n')

if __name__ == "__main__":
    if "--prof" in sys.argv:
        PROF = True; sys.argv.remove("--prof")
    for x in list(sys.argv):
        if x.startswith("--pref0="):
            PREF0 = int(x.split("=")[1]); sys.argv.remove(x)
    build(sys.argv[1] if len(sys.argv) > 1 else "parallel_sum__linear_kernel_hedgehog__dense_activation_squared_relu__prompt.s")
```

```python
import re

def _regs(tok):
    tok = tok.strip()
    tok = tok.lstrip('-')
    m = re.fullmatch(r'abs\((.*)\)', tok)
    if m: tok = m.group(1)
    m = re.fullmatch(r'\|(.*)\|', tok)
    if m: tok = m.group(1)
    m = re.fullmatch(r'([vsa])(\d+)', tok)
    if m: return [(m.group(1), int(m.group(2)))]
    m = re.fullmatch(r'([vsa])\[(\d+):(\d+)\]', tok)
    if m: return [(m.group(1), i) for i in range(int(m.group(2)), int(m.group(3)) + 1)]
    if tok == 'vcc': return [('s', 106), ('s', 107)]
    if tok == 'vcc_lo': return [('s', 106)]
    if tok == 'vcc_hi': return [('s', 107)]
    if tok == 'exec': return [('s', 126), ('s', 127)]
    if tok == 'm0': return [('s', 124)]
    return []

TRANS = ('v_exp_f32', 'v_log_f32', 'v_rcp_f32', 'v_rsq_f32', 'v_sqrt_f32', 'v_sin_f32', 'v_cos_f32', 'v_rcp_iflag_f32')

class Ins:
    __slots__ = ('text', 'op', 'kind', 'dst', 'src', 'srcC', 'srcAB', 'passes', 'ws', 'dpp', 'wide', 'lds')
    def __init__(self, text):
        self.text = text
        t = text.split(';')[0].strip()
        t = re.sub(r'\s(op_sel|op_sel_hi|neg_lo|neg_hi):\[[^\]]*\]', '', t)
        self.op = t.split()[0] if t else ''
        rest = t[len(self.op):].strip()
        ops = [o.strip() for o in rest.split(',')] if rest else []
        mods = []
        if ops:
            parts = ops[-1].split()
            if parts:
                ops[-1] = parts[0]; mods = parts[1:]
        op = self.op
        self.dst = []; self.src = []; self.srcC = []; self.srcAB = []; self.passes = 0
        self.ws = 1; self.dpp = False; self.wide = False; self.lds = False
        R = lambda i: _regs(ops[i]) if i < len(ops) else []
        allsrc = lambda a: [r for o in ops[a:] for r in _regs(o)]
        if op.endswith(':') or op.startswith('.') or op == '':
            self.kind = 'label'; self.ws = 0
        elif op == 's_nop':
            self.kind = 'nop'; self.ws = int(ops[0], 0) + 1
        elif op.startswith('v_mfma'):
            self.kind = 'mfma'; self.dst = R(0); self.srcAB = R(1) + R(2); self.srcC = R(3); self.src = self.srcAB + self.srcC
            self.passes = 8 if '32x32' in op else 4
        elif op.startswith('v_permlane'):
            self.kind = 'perm'; self.dst = R(0) + R(1); self.src = R(0) + R(1)
        elif op.startswith('v_cmp'):
            self.kind = 'valu'; self.dst = R(0); self.src = allsrc(1)
        elif op.startswith('v_writelane'):
            self.kind = 'valu'; self.dst = R(0); self.src = allsrc(0)
        elif op.startswith('v_readfirstlane') or op.startswith('v_readlane'):
            self.kind = 'rdlane'; self.dst = R(0); self.src = allsrc(1)
        elif op.startswith('v_'):
            self.kind = 'trans' if op.replace('_e32', '').replace('_e64', '') in TRANS else 'valu'
            self.dst = R(0); self.src = allsrc(1)
            if op.startswith('v_fmac') or op.startswith('v_dot2c') or op.startswith('v_pk_fmac'): self.src += R(0)
            if op.startswith('v_add_co') or op.startswith('v_addc_co') or op.startswith('v_sub_co'):
                self.dst = R(0) + R(1); self.src = allsrc(2)
            if op.startswith('v_cndmask') and len(ops) == 3: self.src += _regs('vcc')
            if any(m.startswith(('row_', 'quad_perm')) for m in mods) or 'quad_perm' in t or 'row_' in t: self.dpp = True
        elif op.startswith('ds_read') or op.startswith('ds_bpermute') or op.startswith('ds_swizzle'):
            self.kind = 'ds'; self.dst = R(0); self.src = allsrc(1)
        elif op.startswith('ds_'):
            self.kind = 'ds'; self.src = allsrc(0)
        elif op.startswith('buffer_load') or op.startswith('global_load'):
            self.kind = 'vmem'
            if 'lds' in mods or '_lds_' in op:
                self.lds = True; self.src = allsrc(0)
            else:
                self.dst = R(0); self.src = allsrc(1)
        elif op.startswith('buffer_store') or op.startswith('global_store') or op.startswith('buffer_atomic') or op.startswith('global_atomic'):
            self.kind = 'vmem'; self.src = allsrc(0)
            if 'x4' in op or 'x3' in op:
                self.wide = R(0) if op.startswith('buffer') else R(1)
        elif op.startswith('buffer_'):
            self.kind = 'vmem'
        elif op.startswith('s_'):
            self.kind = 'salu'
            if op.startswith(('s_cmp', 's_cbranch', 's_branch', 's_waitcnt', 's_barrier', 's_endpgm', 's_sleep', 's_setprio', 's_setpc')):
                self.src = allsrc(0)
            else:
                self.dst = R(0); self.src = allsrc(1)
        else:
            raise ValueError("unknown instr: " + text)

def required_gap(p, c):
    need = 0
    pd = set(p.dst); cs = set(c.src); cd = set(c.dst)
    pv = p.kind in ('valu', 'trans', 'perm', 'rdlane')
    cvalu = c.kind in ('valu', 'trans', 'perm', 'rdlane')
    if pv:
        vd = {r for r in pd if r[0] in 'va'}; sd = {r for r in pd if r[0] == 's'}
        if c.kind == 'mfma' and vd & cs: need = max(need, 2)
        if c.kind == 'perm' and vd & cs: need = max(need, 2)
        if c.dpp and vd & cs: need = max(need, 2)
        if c.kind == 'rdlane' and vd & cs: need = max(need, 1)
        if p.kind == 'trans' and cvalu and c.kind != 'trans' and vd & cs: need = max(need, 1)
        if p.kind == 'trans' and c.kind in ('ds', 'vmem') and vd & cs: need = max(need, 1)
        if sd & cs:
            if c.kind == 'vmem': need = max(need, 5)
            elif c.kind == 'rdlane': need = max(need, 4)
            elif cvalu or c.kind == 'mfma': need = max(need, 2)
            elif c.kind == 'salu': need = max(need, 2)
    if p.kind == 'mfma':
        n = p.passes
        tab_ab = {4: 8, 8: 12}[n]; tab_c = {4: 6, 8: 10}[n]; war = {4: 3, 8: 7}[n]
        if c.kind == 'mfma':
            if pd & set(c.srcAB): need = max(need, tab_ab)
            if pd & set(c.srcC) and not (c.srcC == p.dst and c.passes == n): need = max(need, tab_c)
            if pd & cd and not (c.srcC == p.dst): need = max(need, tab_c)
        elif cvalu or c.kind in ('ds', 'vmem'):
            if pd & (cs | cd): need = max(need, tab_ab)
        if cvalu and set(p.srcC) & cd: need = max(need, war)
    if p.kind == 'salu' and ('s', 124) in pd and c.lds: need = max(need, 1)
    if p.kind == 'vmem' and p.wide and (set(p.wide) & cd) and c.kind != 'label': need = max(need, 2)
    return need

def fix_hazards(lines, report=None):
    out = []
    for ln in lines:
        c = Ins(ln)
        if c.kind != 'label':
            dist = 0; need = 0
            for p in reversed(out):
                if dist >= 13: break
                if p.kind != 'label':
                    g = required_gap(p, c)
                    if g > dist: need = max(need, g - dist)
                dist += p.ws
            while need > 0:
                k = min(need, 16)
                out.append(Ins("  s_nop %d" % (k - 1))); need -= k
                if report is not None: report.append(ln)
        out.append(c)
    return [i.text for i in out]

class Asm:
    def __init__(self): self.l = []
    def __call__(self, s):
        for ln in s.split('\n'):
            if ln.strip(): self.l.append('  ' + ln.strip() if not ln.strip().endswith(':') else ln.strip())
    def label(self, n): self.l.append(n + ':')
    def lines(self): return self.l

def vr(a, n=1): return 'v%d' % a if n == 1 else 'v[%d:%d]' % (a, a + n - 1)
def sr(a, n=1): return 's%d' % a if n == 1 else 's[%d:%d]' % (a, a + n - 1)

def kernel_text(name, body_lines, vgpr, sgpr, align=True):
    t = ['.globl %s' % name, '.p2align 8', '.type %s,@function' % name, name + ':'] + body_lines
    return t

def kd_text(name, vgpr, sgpr):
    acc = (vgpr + 3) // 4 * 4
    return ['.p2align 6', '.amdhsa_kernel %s' % name,
            '  .amdhsa_next_free_vgpr %d' % vgpr, '  .amdhsa_next_free_sgpr %d' % sgpr,
            '  .amdhsa_accum_offset %d' % acc, '  .amdhsa_group_segment_fixed_size 0',
            '  .amdhsa_kernarg_size 96', '  .amdhsa_user_sgpr_count 2',
            '  .amdhsa_user_sgpr_kernarg_segment_ptr 1', '  .amdhsa_system_sgpr_workgroup_id_x 1',
            '.end_amdhsa_kernel']
```

```python
import re
from asmlib import *

def split_lines(text):
    out = []
    for ln in text.split('\n'):
        t = ln.strip()
        if t: out.append(t)
    return out

def atoms(text):
    res = []; cur = None
    for ln in split_lines(text):
        if ln == '{': cur = []
        elif ln == '}': res.append(cur); cur = None
        elif cur is not None: cur.append(ln)
        else: res.append([ln])
    return res

def cost(atom):
    c = 0.0
    for ln in atom:
        op = ln.split()[0]
        if op == 'GAP': c += float(ln.split()[1])
        elif op.replace('_e32', '').replace('_e64', '') in TRANS: c += 2
        elif op.startswith('v_mfma'): c += 2
        elif op.startswith('s_') or op.startswith('WAIT'): c += 0.5
        else: c += 1
    return c

class Side:
    def __init__(self): self.at = []
    def __call__(self, text): self.at += atoms(text)

class S:
    def __init__(self):
        self.items = []
        self.ins = {}
        self.hooks = {}
    def __call__(self, text):
        for at in atoms(text): self.items += at
    def emit(self, side):
        for at in side.at: self.items += at
    def slot(self, key): self.items.append(('SLOT', key))
    def hook(self, name): self.items.append(('HOOK', name))
    def at_hook(self, name, text): self.hooks.setdefault(name, []).extend(split_lines(text))
    def place(self, side, k0, k1):
        idx = [i for i, it in enumerate(self.items) if isinstance(it, tuple) and it[0] == 'SLOT' and k0 <= it[1] < k1]
        assert idx, (k0, k1)
        tot = sum(cost(a) for a in side.at); acc = 0.0
        for a in side.at:
            j = min(len(idx) - 1, int(acc / max(tot, 1e-9) * len(idx)))
            self.ins.setdefault(idx[j], []).extend(a)
            acc += cost(a)
    def flat(self):
        out = []
        for i, it in enumerate(self.items):
            if isinstance(it, tuple):
                if it[0] == 'SLOT': out += self.ins.get(i, [])
                else: out += self.hooks.pop(it[1], [])
            else: out.append(it)
        assert not self.hooks, self.hooks.keys()
        return [l for l in out if not l.startswith('GAP')]

def is_vm(op): return op.startswith(('buffer_', 'global_'))
def is_ds(op): return op.startswith('ds_')

def resolve(lines):
    vm = []; ds = []; vdone = 0; ddone = 0; out = []; skip = False
    for ln in lines:
        op = ln.split()[0]
        if op == 'SKIP_BEGIN': skip = True; continue
        if op == 'SKIP_END': skip = False; continue
        if skip: out.append(ln); continue
        m = re.search(r';@(\S+)', ln)
        tag = m.group(1) if m else None
        if op in ('WAIT', 'WAITX'):
            nv = None; nd = None; keep = (vdone, ddone)
            for t in ln.split(';')[0].split()[1:]:
                iv = [i for i, x in enumerate(vm) if x == t]; idd = [i for i, x in enumerate(ds) if x == t]
                assert iv or idd, "unknown tag " + t
                if iv and iv[-1] >= vdone:
                    n = min(63, len(vm) - 1 - iv[-1]); nv = n if nv is None else min(nv, n)
                if idd and idd[-1] >= ddone:
                    n = min(15, len(ds) - 1 - idd[-1]); nd = n if nd is None else min(nd, n)
            parts = []
            if nv is not None: parts.append('vmcnt(%d)' % nv); vdone = len(vm) - nv
            if nd is not None: parts.append('lgkmcnt(%d)' % nd); ddone = len(ds) - nd
            if parts: out.append('s_waitcnt ' + ' '.join(parts))
            if op == 'WAITX': vdone, ddone = keep
            continue
        if op == 's_waitcnt':
            m2 = re.search(r'vmcnt\((\d+)\)', ln)
            if m2: vdone = max(vdone, len(vm) - int(m2.group(1)))
            m2 = re.search(r'lgkmcnt\((\d+)\)', ln)
            if m2: ddone = max(ddone, len(ds) - int(m2.group(1)))
        if is_vm(op): vm.append(tag)
        elif is_ds(op): ds.append(tag)
        out.append(ln)
    return out

def finish(s):
    lines = resolve(s.flat())
    lines = [(l if l.endswith(':') else '  ' + l) for l in lines]
    rep = []
    lines = fix_hazards(lines, rep)
    return [b.replace(' NEG', ' neg_lo:[0,1] neg_hi:[0,1]') for b in lines], rep
```

```python
import sys
from fw import *

XN_OFF = 0
A2_OFF = 4 << 20
KVP_OFF = 24 << 20
FLAG_OFF = 28 << 20
HF_OFF = FLAG_OFF + 8192
OF_OFF = FLAG_OFF + 16384
XF_OFF = FLAG_OFF + 24576
FLAG_BYTES = 32768
XCH_OFF = 32 << 20
WS_RANGE = 48 << 20
PROF_OFF = 44 << 20
LOG2E = 0x3fb8aa3b
OOB = 0x7f000000

class Cfg:
    PROF = False
    U0 = 40
    USW = 99
    BURST = 26
    W2PF = 1
    PD = 16
    BAR2 = True
C = Cfg()

class Prof:
    def __init__(self, a, vreg, kidx, st=96):
        self.a = a; self.v = vreg; self.n = 0; self.k = kidx; self.st = st; self.names = []
    def stamp(self, name=''):
        if not C.PROF: return
        st = self.st
        self.a(f"""s_waitcnt lgkmcnt(0)
        s_memtime s[{st}:{st+1}]
        s_memrealtime s[{st+2}:{st+3}]
        s_waitcnt lgkmcnt(0)
        v_writelane_b32 v{self.v}, s{st}, {2*self.n}
        v_writelane_b32 v{self.v}, s{st+2}, {2*self.n+1}""")
        self.n += 1; self.names.append(name)
        assert self.n <= 32
    def flush(self, srd, vtmp, swave, nw):
        if not C.PROF: return
        st = self.st
        self.a(f"""s_mul_i32 s{st}, s2, {nw}
        s_add_u32 s{st}, s{st}, s{swave}
        s_lshl_b32 s{st}, s{st}, 8
        s_add_u32 s{st}, s{st}, {PROF_OFF + self.k * (1 << 20)}
        v_lshlrev_b32 v{vtmp}, 2, v1
        buffer_store_dword v{self.v}, v{vtmp}, s[{srd}:{srd+3}], s{st} offen""")
        PROFNAMES[self.k] = (nw, self.names)
PROFNAMES = {}

def srd(a, base_lo, base_hi, nrec):
    return f"""s_mov_b32 s{a}, {base_lo}
s_mov_b32 s{a+1}, {base_hi}
s_mov_b32 s{a+2}, {nrec}
s_mov_b32 s{a+3}, 0x20000"""

def gen_k0():
    a = S()
    pf = Prof(a, 87, 0, 48)
    a("""
    s_cmp_ge_u32 s2, 256
    s_cbranch_scc1 L0_end
    """)
    pf.stamp('start')
    a("""
    s_load_dwordx2 s[4:5], s[0:1], 0
    s_load_dwordx2 s[6:7], s[0:1], 88
    s_load_dwordx2 s[24:25], s[0:1], 8
    s_load_dwordx2 s[28:29], s[0:1], 40
    s_load_dwordx2 s[32:33], s[0:1], 16
    s_load_dwordx2 s[36:37], s[0:1], 48
    s_load_dwordx2 s[44:45], s[0:1], 64
    v_and_b32 v1, 63, v0              ; lane
    v_lshrrev_b32 v2, 6, v0           ; wave
    v_bfe_u32 v3, v1, 4, 1            ; r
    v_and_b32 v4, 15, v1              ; j
    v_lshrrev_b32 v5, 5, v1           ; hi
    s_lshl_b32 s3, s2, 3
    v_lshl_add_u32 v6, v2, 1, v3
    v_add_u32 v6, s3, v6              ; m
    v_lshrrev_b32 v7, 1, v4           ; j>>1
    v_and_b32 v60, 1, v4              ; j&1
    v_lshlrev_b32 v61, 2, v7
    v_lshl_add_u32 v61, v5, 1, v61
    v_add_u32 v61, v61, v60           ; piece
    v_lshlrev_b32 v61, 4, v61
    v_lshl_add_u32 v61, v6, 11, v61   ; voff_in
    s_mov_b32 s10, 4194304
    s_mov_b32 s11, 0x20000
    s_waitcnt lgkmcnt(0)
    s_mov_b32 s8, s4
    s_mov_b32 s9, s5
    """)
    for i in range(4):
        a(f"buffer_load_dwordx4 v[{8+4*i}:{11+4*i}], v61, s[8:11], 0 offen offset:{512*i} ;@X")
    a(srd(12, 's6', 's7', WS_RANGE))
    if C.PD:
        a(f"""
        s_and_b32 s21, s2, 7              ; x
        s_lshr_b32 s22, s2, 3             ; j
        v_lshrrev_b32 v80, 3, v0          ; stage
        v_and_b32 v81, 7, v0              ; l
        v_lshl_add_u32 v82, v80, 5, s22   ; row
        v_mul_u32_u24 v83, 6144, v82
        v_lshrrev_b32 v84, 1, v81
        v_lshl_add_u32 v83, v84, 11, v83
        v_and_b32 v84, 1, v81
        v_lshl_add_u32 v83, v84, 7, v83
        s_lshl_b32 s23, s21, 8
        v_add_u32 v83, s23, v83
        v_mul_u32_u24 v84, 7168, v82
        s_mul_i32 s23, s21, 768
        v_lshl_add_u32 v85, v81, 7, s23
        s_lshl_b32 s23, s21, 7
        s_add_u32 s23, s23, 6144
        v_mov_b32 v86, s23
        v_cmp_gt_u32 vcc, 6, v81
        v_cndmask_b32 v85, v86, v85, vcc
        v_add_u32 v84, v84, v85           ; w1 offset
        v_mov_b32 v86, {OOB}
        v_cndmask_b32 v83, v86, v83, vcc
        v_cmp_gt_u32 vcc, 7, v81
        v_cndmask_b32 v84, v86, v84, vcc
        v_cmp_gt_u32 vcc, {C.PD}, v80
        v_cndmask_b32 v83, v86, v83, vcc
        v_cndmask_b32 v84, v86, v84, vcc
        s_mov_b32 s26, 6291456
        s_mov_b32 s27, 0x20000
        s_mov_b32 s30, 7340032
        s_mov_b32 s31, 0x20000
        buffer_load_dword v85, v83, s[24:27], 0 offen
        buffer_load_dword v86, v84, s[28:31], 0 offen
        s_mov_b32 s34, 65536
        s_mov_b32 s35, 0x20000
        s_mov_b32 s38, 7168
        s_mov_b32 s39, 0x20000
        s_mov_b32 s46, 2048
        s_mov_b32 s47, 0x20000
        v_lshlrev_b32 v80, 7, v0
        s_lshl_b32 s23, s2, 15
        buffer_load_dword v81, v80, s[32:35], s23 offen
        buffer_load_dword v82, v80, s[36:39], s23 offen
        buffer_load_dword v83, v80, s[44:47], s23 offen
        """)
    a(f"""
    v_lshl_add_u32 v62, v60, 1, v5    ; g
    v_lshlrev_b32 v62, 4, v62
    v_and_b32 v63, 15, v6
    v_add_u32 v62, v62, v63
    v_lshlrev_b32 v62, 4, v62         ; (g*16 + m&15)*16
    v_lshl_add_u32 v62, v7, 11, v62   ; + (j>>1)*2048
    v_bfe_u32 v63, v6, 4, 1
    v_lshl_add_u32 v62, v63, 10, v62  ; + mb*1024
    v_lshrrev_b32 v63, 5, v6
    v_lshl_add_u32 v62, v63, 16, v62  ; + m32blk*65536
    v_mov_b32 v56, 0
    v_mov_b32 v57, 0
    v_mov_b32 v58, 0
    v_mov_b32 v59, 0
    v_lshlrev_b32 v2, 4, v0
    s_lshl_b32 s16, s2, 12
    s_add_u32 s16, s16, {FLAG_OFF}
    s_cmp_lt_u32 s2, {FLAG_BYTES // 4096}
    s_cselect_b32 s16, s16, {OOB}
    buffer_store_dwordx4 v[56:59], v2, s[12:15], s16 offen
    s_mov_b32 s17, 0xffff0000
    s_mov_b32 s18, 16384
    s_mov_b32 s19, 32768
    s_mov_b32 s20, 49152
    WAIT X
    """)
    pf.stamp('xloaded')
    F = 24
    for k in range(16):
        a(f"v_lshlrev_b32 v{F+2*k}, 16, v{8+k}")
        a(f"v_and_b32 v{F+2*k+1}, s17, v{8+k}")
    def tree(src):
        for k in range(8):
            a(f"v_pk_add_f32 v[{8+2*k}:{9+2*k}], v[{src+4*k}:{src+4*k+1}], v[{src+4*k+2}:{src+4*k+3}]")
        n = 8
        while n > 1:
            for k in range(n // 2):
                a(f"v_pk_add_f32 v[{8+2*k}:{9+2*k}], v[{8+4*k}:{9+4*k}], v[{8+4*k+2}:{8+4*k+3}]")
            n //= 2
        a("v_add_f32 v56, v8, v9")
    def xlane():
        for r in (8, 4, 2, 1):
            a(f"v_add_f32 v56, v56, v56 row_ror:{r}")
        a("v_mov_b32 v57, v56")
        a("v_permlane32_swap_b32 v56, v57")
        a("v_add_f32 v56, v56, v57")
    tree(F); xlane()
    a("v_mul_f32 v58, 0x3a800000, v56")
    a("v_mov_b32 v59, v58")
    for k in range(16):
        a(f"v_pk_add_f32 v[{8+2*(k%8)}:{9+2*(k%8)}], v[{F+2*k}:{F+2*k+1}], v[58:59] NEG")
        if k < 8:
            a(f"v_pk_mul_f32 v[{64+2*k}:{65+2*k}], v[{8+2*k}:{9+2*k}], v[{8+2*k}:{9+2*k}]")
        else:
            kk = k - 8
            a(f"v_pk_fma_f32 v[{64+2*kk}:{65+2*kk}], v[{8+2*kk}:{9+2*kk}], v[{8+2*kk}:{9+2*kk}], v[{64+2*kk}:{65+2*kk}]")
    n = 8
    while n > 1:
        for k in range(n // 2):
            a(f"v_pk_add_f32 v[{64+2*k}:{65+2*k}], v[{64+4*k}:{65+4*k}], v[{64+4*k+2}:{64+4*k+3}]")
        n //= 2
    a("v_add_f32 v56, v64, v65")
    xlane()
    a("""
    v_mul_f32 v56, 0x3a800000, v56        ; var
    v_cvt_pk_bf16_f32 v56, 0, v56         ; var_bf
    v_cvt_pk_bf16_f32 v58, 0, v58         ; mean_bf
    v_add_f32 v56, 0x3727c5ac, v56        ; + 1e-5
    v_cvt_pk_bf16_f32 v56, 0, v56
    v_sqrt_f32 v56, v56
    v_cvt_pk_bf16_f32 v56, 0, v56
    v_rcp_f32 v56, v56
    v_mov_b32 v59, v58
    v_mov_b32 v57, v56
    """)
    for k in range(16):
        a(f"v_pk_add_f32 v[{F+2*k}:{F+2*k+1}], v[{F+2*k}:{F+2*k+1}], v[58:59] NEG")
    for k in range(32):
        a(f"v_cvt_pk_bf16_f32 v{F+k}, 0, v{F+k}")
    so = ['0', 's18', 's19', 's20']
    for i in range(4):
        for k in range(4 * i, 4 * i + 4):
            a(f"v_pk_mul_f32 v[{F+2*k}:{F+2*k+1}], v[{F+2*k}:{F+2*k+1}], v[56:57]")
        for k in range(4 * i, 4 * i + 4):
            a(f"v_cvt_pk_bf16_f32 v{8+k}, v{F+2*k}, v{F+2*k+1}")
        if i > 0:
            b = 8 + 4 * (i - 1)
            a(f"v_permlane32_swap_b32 v{b}, v{b+2}")
            a(f"v_permlane32_swap_b32 v{b+1}, v{b+3}")
            a(f"buffer_store_dwordx4 v[{b}:{b+3}], v62, s[12:15], {so[i-1]} offen")
    b = 20
    a(f"v_permlane32_swap_b32 v{b}, v{b+2}")
    a(f"v_permlane32_swap_b32 v{b+1}, v{b+3}")
    a(f"buffer_store_dwordx4 v[{b}:{b+3}], v62, s[12:15], {so[3]} offen")
    if C.PROF:
        pf.stamp('stored')
        a("s_waitcnt vmcnt(0)")
        pf.stamp('end')
        a("v_lshrrev_b32 v2, 6, v0")
        a("v_readfirstlane_b32 s3, v2")
        pf.flush(12, 2, 3, 4)
    a("L0_end:")
    a("s_endpgm")
    return a, 88, 56

vL, vA, vD1, vD2 = 1, 2, 3, 4
vQe, vQo, vH = 5, 6, 7
vDUM, vPROF = 12, 13
B1, WP = 14, 28
AR, BF, ACC = 36, 100, 152
acc = lambda mb, nb: ACC + (mb * 13 + nb) * 4
SLOT1 = 14336
WPHI = 161792
LDS_MAIN = 163840
KFQ, PK, E, ST, TT = 36, 52, 68, 100, 108
PH = PK
vTW, vTR, vONE, vSEL = 3, 4, 5, 6
LAB = [0]
def lab(p):
    LAB[0] += 1
    return f"L{p}{LAB[0]}"

def k1_setup(a, pf):
    t = 36
    for n in range(448):
        assert (n * 5462) >> 16 == n // 12 and (n * 4682) >> 16 == n // 14
    a(f"""
    s_load_dwordx2 s[8:9], s[0:1], 88      ; ws
    s_load_dwordx2 s[4:5], s[0:1], 8       ; wqkv
    s_load_dwordx2 s[6:7], s[0:1], 40      ; w1
    s_load_dwordx2 s[10:11], s[0:1], 16    ; wphi
    s_load_dwordx2 s[12:13], s[0:1], 48    ; b1
    s_load_dwordx2 s[14:15], s[0:1], 56    ; w2
    s_load_dwordx2 s[60:61], s[0:1], 24    ; wo
    s_load_dwordx2 s[62:63], s[0:1], 0     ; x
    s_load_dwordx2 s[64:65], s[0:1], 64    ; b2
    s_load_dwordx2 s[66:67], s[0:1], 72    ; out
    v_lshrrev_b32 v{t}, 6, v0
    v_and_b32 v{vL}, 63, v0
    v_readfirstlane_b32 s36, v{t}          ; wave
    s_and_b32 s46, s2, 7                   ; x
    s_lshr_b32 s47, s2, 3                  ; j
    s_lshl_b32 s37, s46, 2
    s_lshr_b32 s48, s47, 3
    s_add_u32 s37, s37, s48                ; head
    s_and_b32 s38, s47, 7                  ; mtile
    v_lshlrev_b32 v{vA}, 4, v{vL}
    s_lshl_b32 s39, s38, 3
    s_add_u32 s39, s39, s36                ; m32blk
    s_lshl_b32 s40, s36, 10                ; m0 base 1
    ; ---- dma voffsets : Bq formula with ci = 64*w + l
    s_lshl_b32 s48, s36, 6
    v_add_u32 v{t}, s48, v{vL}                 ; ci
    v_mul_u32_u24 v{t+1}, 5462, v{t}
    v_lshrrev_b32 v{t+1}, 16, v{t+1}        ; row
    v_mul_u32_u24 v{t+2}, 12, v{t+1}
    v_sub_u32 v{t+2}, v{t}, v{t+2}       ; pos
    v_bfe_u32 v{t+3}, v{t+1}, 2, 1
    v_lshlrev_b32 v{t+3}, 1, v{t+3}
    v_xor_b32 v{t+2}, v{t+2}, v{t+3}     ; cc
    v_mul_u32_u24 v{vD1}, 6144, v{t+1}
    v_lshrrev_b32 v{t+3}, 2, v{t+2}
    v_lshl_add_u32 v{vD1}, v{t+3}, 11, v{vD1}
    v_and_b32 v{t+3}, 3, v{t+2}
    v_lshl_add_u32 v{vD1}, v{t+3}, 4, v{vD1}
    s_lshl_b32 s48, s37, 6
    v_add_u32 v{vD1}, s48, v{vD1}
    """)
    def bh_off(dst, ci_s):
        a(f"""
        v_add_u32 v{t}, {ci_s}, v{vL}
        v_mul_u32_u24 v{t+1}, 4682, v{t}
        v_lshrrev_b32 v{t+1}, 16, v{t+1}        ; row
        v_mul_u32_u24 v{t+2}, 14, v{t+1}
        v_sub_u32 v{t+2}, v{t}, v{t+2}       ; cc
        v_mul_u32_u24 v{dst}, 7168, v{t+1}
        v_lshl_add_u32 v{dst}, v{t+2}, 4, v{dst}
        v_mov_b32 v{t+3}, s49
        v_mov_b32 v{t+4}, s50
        v_cmp_gt_u32 vcc, 12, v{t+2}
        v_cndmask_b32 v{t+3}, v{t+4}, v{t+3}, vcc
        v_add_u32 v{dst}, v{dst}, v{t+3}
        """)
    a(f"""
    s_mul_i32 s49, s37, 192
    s_lshl_b32 s50, s37, 5
    s_add_u32 s50, s50, {6144-192}
    s_lshl_b32 s48, s36, 6
    """)
    bh_off(vD2, 's48')
    a(f"""
    s_cmp_lt_u32 s36, 6
    s_cbranch_scc1 L1_dok
    v_mov_b32 v{vD1}, v{vD2}
    v_mov_b32 v{vD2}, {OOB}
    s_cmp_eq_u32 s36, 6
    s_cbranch_scc1 L1_dok
    s_add_u32 s48, s47, {32*C.PD}          ; row
    v_mov_b32 v{t+5}, {OOB}
    v_cmp_lt_u32 vcc, 5, v{vL}
    v_mov_b32 v{t+6}, 0
    v_cndmask_b32 v{t}, v{t+6}, 1, vcc     ; r = l/6
    v_mul_u32_u24 v{t+1}, 6, v{t}
    v_sub_u32 v{t+1}, v{vL}, v{t+1}        ; c
    v_lshl_add_u32 v{t}, v{t}, 5, s48      ; row
    v_mul_u32_u24 v{vD1}, 6144, v{t}
    v_lshrrev_b32 v{t+2}, 1, v{t+1}
    v_lshl_add_u32 v{vD1}, v{t+2}, 11, v{vD1}
    v_and_b32 v{t+2}, 1, v{t+1}
    v_lshl_add_u32 v{vD1}, v{t+2}, 7, v{vD1}
    s_lshl_b32 s50, s46, 8
    v_add_u32 v{vD1}, s50, v{vD1}
    v_cmp_gt_u32 vcc, 12, v{vL}
    s_nop 1
    v_cndmask_b32 v{vD1}, v{t+5}, v{vD1}, vcc
    v_cmp_lt_u32 vcc, 6, v{vL}
    s_nop 1
    v_cndmask_b32 v{t}, v{t+6}, 1, vcc     ; r = l/7
    v_mul_u32_u24 v{t+1}, 7, v{t}
    v_sub_u32 v{t+1}, v{vL}, v{t+1}        ; c
    v_lshl_add_u32 v{t}, v{t}, 5, s48      ; row
    v_mul_u32_u24 v{vD2}, 7168, v{t}
    s_mul_i32 s49, s46, 768
    v_lshl_add_u32 v{t+2}, v{t+1}, 7, s49
    s_lshl_b32 s49, s46, 7
    s_add_u32 s49, s49, 6144
    v_mov_b32 v{t+3}, s49
    v_cmp_gt_u32 vcc, 6, v{t+1}
    s_nop 1
    v_cndmask_b32 v{t+2}, v{t+3}, v{t+2}, vcc
    v_add_u32 v{vD2}, v{vD2}, v{t+2}
    v_cmp_gt_u32 vcc, 14, v{vL}
    s_nop 1
    v_cndmask_b32 v{vD2}, v{t+5}, v{vD2}, vcc
    L1_dok:
    ; ---- tr read addrs
    v_lshrrev_b32 v{t}, 2, v{vL}
    v_and_b32 v{t+1}, 3, v{vL}
    v_lshlrev_b32 v{t+1}, 3, v{t+1}         ; (l&3)*8
    v_mul_u32_u24 v{vH}, 224, v{t}
    v_add_u32 v{vH}, v{vH}, v{t+1}
    v_add_u32 v{vH}, 6144, v{vH}
    v_mul_u32_u24 v{vQe}, 192, v{t}
    v_add_u32 v{vQe}, v{vQe}, v{t+1}
    v_bfe_u32 v{t+2}, v{vL}, 4, 1
    v_lshlrev_b32 v{t+2}, 5, v{t+2}
    v_sub_u32 v{vQo}, v{vQe}, v{t+2}
    v_add_u32 v{vQe}, v{vQe}, v{t+2}
    v_add_u32 v{vQe+3}, {4*SLOT1}, v{vQe}
    v_add_u32 v{vQo+3}, {4*SLOT1}, v{vQo}
    v_add_u32 v{vH+3}, {4*SLOT1}, v{vH}
    v_lshl_add_u32 v11, v{t}, 6, v{t+1}
    v_add_u32 v11, {WPHI}, v11
    ; b1 offset (v12): g*8
    v_lshrrev_b32 v{vDUM}, 4, v{vL}
    v_lshlrev_b32 v{vDUM}, 3, v{vDUM}
    s_mov_b32 s18, 65536
    s_mov_b32 s19, 0x20000
    s_mov_b32 s23, 0x20000
    s_mov_b32 s27, 0x20000
    s_lshl_b32 s48, s39, 16
    s_mov_b32 s41, 0                       ; A soffset
    s_waitcnt lgkmcnt(0)
    s_add_u32 s16, s8, s48
    s_addc_u32 s17, s9, 0
    s_cmp_lg_u32 s36, 6
    s_cselect_b32 s20, s4, s6
    s_cselect_b32 s21, s5, s7
    s_mov_b32 s22, {1024*7168}
    s_cselect_b32 s22, {1024*6144}, s22
    s_mov_b32 s45, {32*7168}
    s_cselect_b32 s45, {32*6144}, s45
    s_cselect_b32 s68, s40, 12288          ; m0 base 1
    s_mov_b32 s24, s6
    s_mov_b32 s25, s7
    s_mov_b32 s26, {1024*7168}
    s_mov_b32 s51, {32*7168}
    s_add_u32 s44, s40, 6144               ; m0 base 2
    s_cmp_lt_u32 s36, 6
    s_cselect_b32 s44, s44, 13312
    s_sub_u32 s42, 0, s45
    s_sub_u32 s43, 0, s51
    s_cmp_eq_u32 s36, 7
    s_cselect_b32 s68, 13312, s68
    s_cselect_b32 s45, {64*6144}, s45
    s_cselect_b32 s51, {64*7168}, s51
    s_cselect_b32 s42, {(-(C.U0+1)*64*6144) & 0xffffffff}, s42
    s_cselect_b32 s43, {(-(C.U0+1)*64*7168) & 0xffffffff}, s43
    """)

def k1_switch():
    nops = 32 - C.USW
    n2 = -(-224 // nops); no = -(-64 // nops)
    if not C.W2PF: n2 = no = 0
    return f"""{{
    s_cmp_lg_u32 s36, 7
    s_cbranch_scc1 L1_nosw
    s_mov_b32 s20, s14
    s_mov_b32 s21, s15
    s_mov_b32 s22, {3584*2048}
    s_mov_b32 s45, {n2*128}
    s_mov_b32 s42, {(-n2*128) & 0xffffffff}
    s_mov_b32 s24, s60
    s_mov_b32 s25, s61
    s_mov_b32 s26, {1024*2048}
    s_mov_b32 s51, {no*128}
    s_mov_b32 s43, {(-no*128) & 0xffffffff}
    s_mul_i32 s48, s2, 28672
    s_lshl_b32 s49, s2, 13
    v_lshlrev_b32 v{vD1}, 7, v{vL}
    v_add_u32 v{vD2}, s49, v{vD1}
    v_add_u32 v{vD1}, s48, v{vD1}
    v_cmp_le_u32 vcc, {n2}, v{vL}
    v_mov_b32 v0, {OOB}
    s_nop 0
    v_cndmask_b32 v{vD1}, v{vD1}, v0, vcc
    v_cmp_le_u32 vcc, {no}, v{vL}
    s_nop 1
    v_cndmask_b32 v{vD2}, v{vD2}, v0, vcc
    L1_nosw:
    }}"""

def k1_loadB(u):
    sl = u % 8
    return ([k1_switch()] if u == C.USW else []) + [f"""{{
        s_add_u32 m0, s68, {sl*SLOT1}
        s_add_u32 s42, s42, s45
        buffer_load_dwordx4 v{vD1}, s[20:23], s42 offen lds ;@B{u}
        }}""", f"""{{
        s_add_u32 m0, s44, {sl*SLOT1}
        s_add_u32 s43, s43, s51
        buffer_load_dwordx4 v{vD2}, s[24:27], s43 offen lds ;@B{u}
        }}"""]
def k1_loadA(u):
    sl = u % 8; o = (u & 1) * 2048
    g3 = f"buffer_load_dwordx4 v[{AR+sl*8}:{AR+sl*8+3}], v{vA}, s[16:19], s41 offen offset:{o} ;@A{u}"
    g4 = f"buffer_load_dwordx4 v[{AR+sl*8+4}:{AR+sl*8+7}], v{vA}, s[16:19], s41 offen offset:{o+1024} ;@A{u}"
    if u & 1: g4 += "\ns_add_u32 s41, s41, 4096"
    return [g3, g4]
def k1_reads(nb, u):
    sl = u % 8
    up = 3 if sl >= 4 else 0
    base = (sl % 4) * SLOT1
    if nb < 6:
        reg = (vQo if nb & 1 else vQe) + up; o0 = base + 32 * nb; o1 = o0 + 3072
    else:
        reg = vH + up; o0 = base + 32 * (nb - 6); o1 = o0 + 3584
    return f"""ds_read_b64_tr_b16 v[{BF+nb*4}:{BF+nb*4+1}], v{reg} offset:{o0} ;@R{u}_{nb}
    ds_read_b64_tr_b16 v[{BF+nb*4+2}:{BF+nb*4+3}], v{reg} offset:{o1} ;@R{u}_{nb}"""

def k1_loop(a, pf, extra=None):
    NS = 32
    bars = [s for s in range(NS) if (s < 4 or not C.BAR2 or s % 2 == 0)]
    lastbar = lambda s: max(b for b in bars if b <= s)
    nextbar = lambda s: min([b for b in bars if b > s] + [NS])
    pre = [0, 1, 2]
    planB = {s: [] for s in range(NS)}; planA = {s: [] for s in range(NS)}
    nb_ = na_ = len(pre)
    for s in range(NS):
        k = 0
        while nb_ < NS and nb_ <= min(s + 6, lastbar(s) + 7) and k < 2: planB[s].append(nb_); nb_ += 1; k += 1
        k = 0
        while na_ < NS and na_ <= s + 7 and k < 2: planA[s].append(na_); na_ += 1; k += 1
    for u in pre:
        for g in k1_loadA(u) + k1_loadB(u) if u == 0 else k1_loadB(u) + k1_loadA(u): a(g)
    a(srd(28, 's8', 's9', WS_RANGE))
    a(srd(32, 's10', 's11', 65536))
    a(srd(52, 's12', 's13', 7168))
    a(f"""
    s_and_b32 s49, s36, 1
    s_lshl_b32 s49, s49, 10
    s_add_u32 s58, s49, {WPHI}
    s_lshl_b32 s59, s37, 11
    s_add_u32 s59, s59, s49
    s_mul_i32 s56, s37, 192
    s_lshl_b32 s57, s37, 5
    s_add_u32 s57, s57, 6144
    """)
    extra = dict(extra or {})
    extra.setdefault(8, []).append(f"""{{
    s_mov_b32 m0, s58
    s_nop 0
    buffer_load_dwordx4 v{vA}, s[32:35], s59 offen lds ;@WPH
    }}""")
    for i in range(6):
        extra.setdefault(9 + i // 2, []).append(f"buffer_load_dwordx2 v[{B1+2*i}:{B1+2*i+1}], v{vDUM}, s[52:55], s56 offen offset:{32*i} ;@BIAS")
    extra.setdefault(12, []).append(f"buffer_load_dwordx2 v[{B1+12}:{B1+13}], v{vDUM}, s[52:55], s57 offen ;@BIAS")
    a.at_hook("k1pre16", "WAIT WPH")
    sd = Side()
    for fb in range(2):
        for jj in range(2):
            sd(f"ds_read_b64_tr_b16 v[{WP+fb*4+jj*2}:{WP+fb*4+jj*2+1}], v11 offset:{fb*32+jj*1024} ;@WP")
    sd2 = Side()
    sd2(f"""
    s_mul_i32 s48, s2, 28672
    s_lshl_b32 s49, s36, 12
    s_add_u32 s48, s48, s49
    s_lshl_b32 s49, s2, 13
    {{
    s_cmp_eq_u32 s36, 7
    s_cselect_b32 s52, s60, s14
    s_cselect_b32 s53, s61, s15
    s_mov_b32 s54, {3584*2048}
    s_cselect_b32 s54, {1024*2048}, s54
    s_cselect_b32 s58, s49, s48
    s_cselect_b32 s49, 64, 32
    }}
    v_lshlrev_b32 v11, 7, v{vL}
    v_mov_b32 v{vDUM}, {OOB}
    v_cmp_gt_u32 vcc, s49, v{vL}
    GAP 1
    v_cndmask_b32 v11, v{vDUM}, v11, vcc
    """)
    if C.BURST: extra.setdefault(C.BURST, []).append(f"buffer_load_dword v{vDUM}, v11, s[52:55], s58 offen")
    pf.stamp('issued')
    a("WAIT B0")
    a("s_barrier")
    for nb in range(13): a(k1_reads(nb, 0))
    pf.stamp('first')
    for s in range(NS):
        a.hook(f"k1pre{s}")
        a(f"WAIT A{s}")
        if s in bars:
            need = [u for u in range(s + 1, min(nextbar(s), NS - 1) + 1)]
            if need:
                L = lab('w7')
                a(f"s_cmp_eq_u32 s36, 7\ns_cbranch_scc1 {L}")
                a("WAITX" + ''.join(f" B{u}" for u in need))
                a(f"{L}:")
            a("s_barrier")
        lg = []
        for u in planB[s]: lg += k1_loadB(u)
        for u in planA[s]: lg += k1_loadA(u)
        if extra and s in extra: lg += extra[s]
        pos = {}
        for i, g in enumerate(lg): pos.setdefault(1 + (i * 11) // max(len(lg), 6), []).append(g)
        for nb in range(13):
            if nb == 0: a(f"WAIT R{s}_8")
            if nb == 9: a(f"WAIT R{s}_12")
            for mb in range(2):
                ar = AR + (s % 8) * 8 + mb * 4
                c = '0' if s == 0 else f"v[{acc(mb,nb)}:{acc(mb,nb)+3}]"
                a(f"v_mfma_f32_16x16x32_bf16 v[{acc(mb,nb)}:{acc(mb,nb)+3}], v[{BF+nb*4}:{BF+nb*4+3}], v[{ar}:{ar+3}], {c}")
                a.slot(s + (nb * 2 + mb) / 26.0)
            if s + 1 < NS: a(k1_reads(nb, s + 1))
            for g in pos.get(nb, []): a(g)
    a.place(sd, 16, 18)
    a.place(sd2, 19, 21)

def packfrag(a, dst, r0, r1):
    a(f"v_cvt_pk_bf16_f32 v{dst}, v{r0}, v{r0+1}")
    a(f"v_cvt_pk_bf16_f32 v{dst+1}, v{r0+2}, v{r0+3}")
    a(f"v_cvt_pk_bf16_f32 v{dst+2}, v{r1}, v{r1+1}")
    a(f"v_cvt_pk_bf16_f32 v{dst+3}, v{r1+2}, v{r1+3}")
def red4(a, op, q):
    A_, B_, C_, D_ = q
    a(f"v_permlane32_swap_b32 v{A_}, v{B_}")
    a(f"v_permlane32_swap_b32 v{C_}, v{D_}")
    a(f"{op} v{A_}, v{A_}, v{B_}")
    a(f"{op} v{C_}, v{C_}, v{D_}")
    a(f"v_permlane16_swap_b32 v{A_}, v{C_}")
    a(f"{op} v{A_}, v{A_}, v{C_}")
    a(f"v_mov_b32 v{C_}, v{A_}")
    a(f"v_permlane16_swap_b32 v{A_}, v{C_}")
    a(f"v_mov_b32 v{B_}, v{A_}")
    a(f"v_mov_b32 v{D_}, v{C_}")
    a(f"v_permlane32_swap_b32 v{A_}, v{B_}")
    a(f"v_permlane32_swap_b32 v{C_}, v{D_}")
def feature_map(a, kf, pk):
    for mb in range(2):
        for fb in range(2):
            r = PK + (mb * 2 + fb) * 4
            a(f"v_mfma_f32_16x16x32_bf16 v[{r}:{r+3}], v[{WP+fb*4}:{WP+fb*4+3}], v[{kf(mb)}:{kf(mb)+3}], 0")
    a("GAP 6")
    for k in range(16): a(f"v_cvt_pk_bf16_f32 v{PK+k}, 0, v{PK+k}")
    for mb in range(2):
        r = PK + mb * 8
        mx, mn = ST + 2 * mb, ST + 2 * mb + 1
        a(f"v_max3_f32 v{mx}, v{r}, v{r+1}, v{r+2}")
        a(f"v_min3_f32 v{mn}, v{r}, v{r+1}, v{r+2}")
        a(f"v_max3_f32 v{mx}, v{mx}, v{r+3}, v{r+4}")
        a(f"v_min3_f32 v{mn}, v{mn}, v{r+3}, v{r+4}")
        a(f"v_max3_f32 v{mx}, v{mx}, v{r+5}, v{r+6}")
        a(f"v_min3_f32 v{mn}, v{mn}, v{r+5}, v{r+6}")
        a(f"v_max_f32 v{mx}, v{mx}, v{r+7}")
        a(f"v_max_f32 v{mn}, -v{mn}, -v{r+7}")
    red4(a, "v_max_f32", [ST, ST + 1, ST + 2, ST + 3])
    for k in range(4): a(f"v_mul_f32 v{ST+k}, s56, v{ST+k}")
    for mb in range(2):
        for sg in range(2):
            e0 = E + (mb * 2 + sg) * 8; p0 = PK + mb * 8
            if pk:
                for k in range(0, 8, 2):
                    a(f"v_pk_fma_f32 v[{e0+k}:{e0+k+1}], v[{p0+k}:{p0+k+1}], s[56:57], v[{ST+2*mb}:{ST+2*mb+1}] op_sel:[0,0,{sg}] op_sel_hi:[1,0,{sg}] neg_lo:[{sg},0,1] neg_hi:[{sg},0,1]")
            else:
                for k in range(8):
                    a(f"v_fma_f32 v{e0+k}, {'-' if sg else ''}v{p0+k}, s56, -v{ST+2*mb+sg}")
            for k in range(8): a(f"v_exp_f32 v{e0+k}, v{e0+k}")
    for q in range(4):
        e = E + q * 8; s_ = ST + 4 + q
        if pk:
            a(f"v_pk_add_f32 v[{TT}:{TT+1}], v[{e}:{e+1}], v[{e+2}:{e+3}]")
            a(f"v_pk_add_f32 v[{TT+2}:{TT+3}], v[{e+4}:{e+5}], v[{e+6}:{e+7}]")
            a(f"v_pk_add_f32 v[{TT}:{TT+1}], v[{TT}:{TT+1}], v[{TT+2}:{TT+3}]")
            a(f"v_add_f32 v{s_}, v{TT}, v{TT+1}")
        else:
            a(f"v_add_f32 v{TT}, v{e}, v{e+2}")
            a(f"v_add_f32 v{TT+1}, v{e+1}, v{e+3}")
            a(f"v_add_f32 v{TT+2}, v{e+4}, v{e+6}")
            a(f"v_add_f32 v{TT+3}, v{e+5}, v{e+7}")
            a(f"v_add_f32 v{TT}, v{TT}, v{TT+2}")
            a(f"v_add_f32 v{TT+1}, v{TT+1}, v{TT+3}")
            a(f"v_add_f32 v{s_}, v{TT}, v{TT+1}")
    red4(a, "v_add_f32", [ST + 4, ST + 5, ST + 6, ST + 7])
    for q in range(4): a(f"v_rcp_f32 v{ST+4+q}, v{ST+4+q}")
    for q in range(4):
        e = E + q * 8
        if pk:
            sp = ST + 4 + (q & ~1); o = q & 1
            for k in range(0, 8, 2):
                a(f"v_pk_mul_f32 v[{e+k}:{e+k+1}], v[{e+k}:{e+k+1}], v[{sp}:{sp+1}] op_sel:[0,{o}] op_sel_hi:[1,{o}]")
        else:
            for k in range(8): a(f"v_mul_f32 v{e+k}, v{ST+4+q}, v{e+k}")
        for k in range(4): a(f"v_cvt_pk_bf16_f32 v{PH+q*4+k}, v{e+2*k}, v{e+2*k+1}")

def post_setup(a):
    t = TT
    a(f"""
    s_mov_b32 s56, {LOG2E}
    s_mov_b32 s57, 0xffff0000
    v_lshrrev_b32 v{t}, 4, v{vL}               ; g
    v_and_b32 v{t+1}, 15, v{vL}                ; m
    s_lshl_b32 s48, s36, 5
    v_add_u32 v{vTW}, s48, v{t+1}
    v_lshlrev_b32 v{vTW}, 8, v{vTW}
    v_and_b32 v{t+2}, 7, v{t+1}
    v_lshl_add_u32 v{vTW}, v{t+2}, 5, v{vTW}
    v_lshrrev_b32 v{t+2}, 2, v{t+1}
    v_xor_b32 v{t+2}, v{t+2}, v{t}
    v_lshl_add_u32 v{vTW}, v{t+2}, 3, v{vTW}
    v_lshrrev_b32 v{t+2}, 2, v{vL}
    v_lshlrev_b32 v{vTR}, 8, v{t+2}
    v_and_b32 v{t+2}, 7, v{t+2}
    v_lshl_add_u32 v{vTR}, v{t+2}, 5, v{vTR}
    v_and_b32 v{t+2}, 3, v{vL}
    v_xor_b32 v{t+2}, v{t+2}, v{t}
    v_lshl_add_u32 v{vTR}, v{t+2}, 3, v{vTR}
    v_mov_b32 v{vONE}, 1
    v_mov_b32 v{vSEL}, {OOB}
    v_cmp_eq_u32 vcc, 0, v{vL}
    v_cndmask_b32 v{vSEL}, v{vSEL}, 0, vcc
    s_mul_i32 s59, s39, 294912
    s_add_u32 s59, s59, {A2_OFF}
    """)

def h_epilogue(a, HP, sc):
    BI = TT
    for i in range(7):
        nb = 6 + i
        a(f"v_lshlrev_b32 v{BI}, 16, v{B1+2*i}")
        a(f"v_and_b32 v{BI+1}, s57, v{B1+2*i}")
        a(f"v_lshlrev_b32 v{BI+2}, 16, v{B1+2*i+1}")
        a(f"v_and_b32 v{BI+3}, s57, v{B1+2*i+1}")
        rs = [(acc(mb, nb) + 2 * hh, BI + 2 * hh, HP + mb * 16 + i * 2 + hh) for mb in range(2) for hh in range(2)]
        for rr, bi, d in rs:
            a(f"v_cvt_pk_bf16_f32 v{rr}, 0, v{rr}")
            a(f"v_cvt_pk_bf16_f32 v{rr+1}, 0, v{rr+1}")
        for rr, bi, d in rs: a(f"v_pk_add_f32 v[{rr}:{rr+1}], v[{rr}:{rr+1}], v[{bi}:{bi+1}]")
        for rr, bi, d in rs: a(f"v_cvt_pk_bf16_f32 v{d}, v{rr}, v{rr+1}")
        for rr, bi, d in rs: a(f"v_pk_max_i16 v{d}, v{d}, 0")
        for rr, bi, d in rs:
            a(f"v_lshlrev_b32 v{rr}, 16, v{d}")
            a(f"v_and_b32 v{rr+1}, s57, v{d}")
        for rr, bi, d in rs: a(f"v_pk_mul_f32 v[{rr}:{rr+1}], v[{rr}:{rr+1}], v[{rr}:{rr+1}]")
        for rr, bi, d in rs: a(f"v_cvt_pk_bf16_f32 v{d}, v{rr}, v{rr+1}")
        if i in (1, 3, 5):
            c = i // 2
            if c == 0:
                a(f"s_mul_i32 s48, s37, {3*2048}")
                a(f"s_add_u32 s48, s48, s59")
                a(f"s_add_u32 s48, s48, {32*2048}")
            if c == 2: a(f"s_add_u32 s48, s48, 4096")
            for mb in range(2):
                r = HP + mb * 16 + c * 4
                a(f"buffer_store_dwordx4 v[{r}:{r+3}], v{vA}, s[28:31], s48 offen offset:{(c&1)*2048+mb*1024}{sc} ;@HS")
    a(f"""
    s_lshr_b32 s48, s37, 1
    s_lshl_b32 s48, s48, 11
    s_add_u32 s48, s48, s59
    s_add_u32 s48, s48, {128*2048}
    s_and_b32 s49, s37, 1
    s_lshl_b32 s49, s49, 3
    s_add_u32 s48, s48, s49
    """)
    for mb in range(2):
        r = HP + mb * 16 + 12
        a(f"buffer_store_dwordx2 v[{r}:{r+1}], v{vA}, s[28:31], s48 offen offset:{mb*1024}{sc} ;@HS")

def t_write(a):
    t = TT
    for Q in range(6):
        a(f"v_xor_b32 v{t+(Q&1)}, {Q<<5}, v{vTW}")
        for mb in range(2):
            src = PH + (mb * 2 + (Q >> 1)) * 4 + (Q & 1) * 2 if Q < 4 else acc(mb, 4) + (Q - 4) * 2
            a(f"ds_write_b64 v{t+(Q&1)}, v[{src}:{src+1}] offset:{mb*4096} ;@TW")
    a(f"""
    s_and_b32 s48, s36, 3
    s_lshl_b32 s48, s48, 5
    v_xor_b32 v{t+2}, s48, v{vTR}
    s_lshr_b32 s48, s36, 2
    s_add_u32 s48, s48, 4
    s_lshl_b32 s48, s48, 5
    v_xor_b32 v{t+3}, s48, v{vTR}        ; v cols Q = 4 + (w>>2)
    v_mov_b32 v{ST}, 0x3f803f80
    v_mov_b32 v{ST+1}, 0x3f803f80
    v_mov_b32 v{ST+2}, 0x3f803f80
    v_mov_b32 v{ST+3}, 0x3f803f80
    """)

def kv_stage(a):
    t = TT
    FA = E; FB_ = 192; KVT = PK; ZT = PK + 4
    def mm(k2):
        a(f"WAIT KR{k2}")
        c = '0' if k2 == 0 else f"v[{KVT}:{KVT+3}]"
        a(f"v_mfma_f32_16x16x32_bf16 v[{KVT}:{KVT+3}], v[{FA+k2*4}:{FA+k2*4+3}], v[{FB_+k2*4}:{FB_+k2*4+3}], {c}")
        c = '0' if k2 == 0 else f"v[{ZT}:{ZT+3}]"
        a(f"v_mfma_f32_16x16x32_bf16 v[{ZT}:{ZT+3}], v[{FA+k2*4}:{FA+k2*4+3}], v[{ST}:{ST+3}], {c}")
    for ks in range(8):
        for jj in range(2):
            a(f"ds_read_b64_tr_b16 v[{FA+ks*4+jj*2}:{FA+ks*4+jj*2+1}], v{t+2} offset:{ks*8192+jj*4096} ;@KR{ks}")
        for jj in range(2):
            a(f"ds_read_b64_tr_b16 v[{FB_+ks*4+jj*2}:{FB_+ks*4+jj*2+1}], v{t+3} offset:{ks*8192+jj*4096} ;@KR{ks}")
        if ks >= 3: mm(ks - 3)
    a(f"""
    s_lshl_b32 s48, s37, 3
    s_add_u32 s48, s48, s38
    s_mul_i32 s48, s48, 12288
    s_add_u32 s48, s48, {KVP_OFF}
    s_and_b32 s49, s40, 0xfff
    s_add_u32 s49, s49, s48
    s_add_u32 s49, s49, 8192               ; z tile (w&3)
    s_add_u32 s48, s48, s40                ; + w*1024
    """)
    for k2 in (5, 6, 7): mm(k2)
    a(f"""
    buffer_store_dwordx4 v[{KVT}:{KVT+3}], v{vA}, s[28:31], s48 offen sc1 ;@KS
    buffer_store_dwordx4 v[{ZT}:{ZT+3}], v{vA}, s[28:31], s49 offen sc1 ;@KS
    s_lshl_b32 s58, s37, 8
    s_lshl_b32 s48, s36, 5
    s_add_u32 s58, s58, s48
    s_add_u32 s58, s58, {FLAG_OFF}
    """)
def kv_flag(a):
    a(f"""{{
    s_lshl_b32 s48, s38, 2
    s_add_u32 s48, s48, s58
    WAIT KS
    buffer_store_dword v{vONE}, v{vSEL}, s[28:31], s48 offen sc1
    }}""")

def poll_issue(a, vf, voff, sbase, tag):
    a(f"buffer_load_dword v{vf}, v{voff}, s[28:31], s{sbase} offen sc1 ;@{tag}")
def poll_check(a, vf, voff, sbase, tag):
    ok = lab('ok'); lp = lab('sp')
    a(f"""{{
    WAIT {tag}
    v_cmp_ne_u32 vcc, 1, v{vf}
    s_mov_b32 s49, 0
    s_nop 0
    s_cmp_eq_u64 vcc, 0
    s_cbranch_scc1 {ok}
    SKIP_BEGIN
    {lp}:
    s_sleep 1
    buffer_load_dword v{vf}, v{voff}, s[28:31], s{sbase} offen sc1
    s_waitcnt vmcnt(0)
    v_cmp_ne_u32 vcc, 1, v{vf}
    s_add_u32 s49, s49, 1
    s_nop 0
    s_cmp_eq_u64 vcc, 0
    s_cbranch_scc1 {ok}
    s_cmp_lt_u32 s49, 0x40000
    s_cbranch_scc1 {lp}
    SKIP_END
    {ok}:
    }}""")

PL = E; ZL = ST
def partial_loads(a):
    a(f"""
    s_mul_i32 s48, s37, {8*12288}
    s_add_u32 s48, s48, {KVP_OFF}
    s_and_b32 s49, s40, 0xfff
    s_add_u32 s49, s49, s48
    s_add_u32 s49, s49, 8192
    s_add_u32 s48, s48, s40
    v_and_b32 v{TT}, 7, v{vL}
    v_mul_u32_u24 v{TT}, 12288, v{TT}
    v_lshrrev_b32 v{TT+1}, 4, v{vL}
    v_lshl_add_u32 v{TT}, v{TT+1}, 8, v{TT}
    buffer_load_dwordx4 v[{ZL}:{ZL+3}], v{TT}, s[28:31], s49 offen sc1 ;@PZ
    """)
    for mt in range(8):
        a(f"""{{
        buffer_load_dwordx4 v[{PL+mt*4}:{PL+mt*4+3}], v{vA}, s[28:31], s48 offen sc1 ;@PP{mt}
        s_add_u32 s48, s48, 12288
        }}""")
def partial_reduce(a, KVF, pk):
    a(f"""
    s_lshr_b32 s49, s36, 1
    s_lshl_b32 s49, s49, 10
    s_and_b32 s50, s36, 1
    s_lshl_b32 s50, s50, 3
    s_add_u32 s49, s49, s50
    s_add_u32 s49, s49, {KVF}
    v_add_u32 v{TT}, s49, v{vA}
    s_and_b32 s49, s49, {~2048 & 0xffffffff}
    v_add_u32 v{TT+1}, s49, v{vA}
    WAIT PZ
    """)
    assert KVF % 4096 == 0
    for r in (4, 2, 1):
        for k in range(4): a(f"v_add_f32 v{ZL+k}, v{ZL+k}, v{ZL+k} row_ror:{r}")
    a(f"v_cvt_pk_bf16_f32 v{ZL}, v{ZL}, v{ZL+1}")
    a(f"v_cvt_pk_bf16_f32 v{ZL+1}, v{ZL+2}, v{ZL+3}")
    a(f"ds_write_b64 v{TT+1}, v[{ZL}:{ZL+1}] offset:4096 ;@KW")
    P = PL
    for mt in range(1, 8):
        a(f"WAIT PP{mt}")
        if pk:
            a(f"v_pk_add_f32 v[{P}:{P+1}], v[{P}:{P+1}], v[{P+mt*4}:{P+mt*4+1}]")
            a(f"v_pk_add_f32 v[{P+2}:{P+3}], v[{P+2}:{P+3}], v[{P+mt*4+2}:{P+mt*4+3}]")
        else:
            for k in range(4): a(f"v_add_f32 v{P+k}, v{P+k}, v{P+mt*4+k}")
    a(f"v_cvt_pk_bf16_f32 v{P}, v{P}, v{P+1}")
    a(f"v_cvt_pk_bf16_f32 v{P+1}, v{P+2}, v{P+3}")
    a(f"ds_write_b64 v{TT}, v[{P}:{P+1}] ;@KW")
def o_stage(a, KVF, sc):
    KV = E
    O = [28, 92]
    TP = 40
    a(f"v_add_u32 v{TT}, {KVF}, v{vA}")
    for t in range(6):
        a(f"ds_read_b128 v[{KV+t*4}:{KV+t*4+3}], v{TT} offset:{t*1024} ;@KV")
    a("GAP 4")
    a("WAIT KV")
    for mb in range(2):
        for db in range(3):
            r = O[mb] + db * 4
            a(f"v_mfma_f32_16x16x32_bf16 v[{r}:{r+3}], v[{KV+db*8}:{KV+db*8+3}], v[{PH+mb*8}:{PH+mb*8+3}], 0")
    for mb in range(2):
        for db in range(3):
            r = O[mb] + db * 4
            a(f"v_mfma_f32_16x16x32_bf16 v[{r}:{r+3}], v[{KV+db*8+4}:{KV+db*8+7}], v[{PH+mb*8+4}:{PH+mb*8+7}], v[{r}:{r+3}]")
    a(f"s_lshl_b32 s50, s37, 11")
    a(f"s_add_u32 s50, s50, s59")
    a("GAP 4")
    for mb in range(2):
        dn = O[mb] + 8
        a(f"v_cvt_pk_bf16_f32 v{dn}, 0, v{dn}")
        a(f"v_add_f32 v{dn}, 0x358637bd, v{dn}")
        a(f"v_cvt_pk_bf16_f32 v{dn}, 0, v{dn}")
        a(f"v_rcp_f32 v{dn}, v{dn}")
        r = O[mb]
        for k in range(8): a(f"v_cvt_pk_bf16_f32 v{r+k}, 0, v{r+k}")
        for k in range(8): a(f"v_mul_f32 v{r+k}, v{dn}, v{r+k}")
        t = TP + mb * 4
        for k in range(4): a(f"v_cvt_pk_bf16_f32 v{t+k}, v{r+2*k}, v{r+2*k+1}")
        a(f"buffer_store_dwordx4 v[{t}:{t+3}], v{vA}, s[28:31], s50 offen offset:{mb*1024}{sc} ;@OS")

def gen_k1():
    a = S()
    pf = Prof(a, vPROF, 1)
    a("""
    s_cmp_ge_u32 s2, 256
    s_cbranch_scc1 L1_end
    """)
    pf.stamp('start')
    k1_setup(a, pf)
    pf.stamp('setup')
    k1_loop(a, pf)
    pf.stamp('loop')
    post_setup(a)
    for mb in range(2): packfrag(a, acc(mb, 2), acc(mb, 2), acc(mb, 3))
    for mb in range(2): packfrag(a, KFQ + mb * 4, acc(mb, 0), acc(mb, 1))
    for mb in range(2): packfrag(a, acc(mb, 4), acc(mb, 4), acc(mb, 5))
    a("WAIT BIAS")
    h_epilogue(a, 112, C.SC)
    pf.stamp('hepi')
    a("WAIT WP")
    feature_map(a, lambda mb: acc(mb, 2), True)
    pf.stamp('fmk')
    a("WAIT B31")
    a("s_barrier")
    t_write(a)
    a("WAIT TW")
    a("s_barrier")
    kv_stage(a)
    kv_flag(a)
    pf.stamp('kv')
    a(f"v_and_b32 v7, 7, v{vL}")
    a(f"v_lshlrev_b32 v7, 2, v7")
    feature_map(a, lambda mb: KFQ + mb * 4, True)
    poll_issue(a, 8, 7, 58, 'KF')
    pf.stamp('fmq')
    poll_check(a, 8, 7, 58, 'KF')
    pf.stamp('poll')
    partial_loads(a)
    partial_reduce(a, 65536, True)
    a("WAIT KW")
    a("s_barrier")
    pf.stamp('reduce')
    o_stage(a, 65536, C.SC)
    if C.PROF:
        pf.stamp('o')
        a("s_waitcnt vmcnt(0)")
        pf.stamp('end')
        pf.flush(28, 12, 36, 8)
    a("L1_end:")
    a("s_endpgm")
    return a, 256, 100, LDS_MAIN
C.SC = ''


ACC2, BF2, AR2, ACCA = 192, 160, 112, 36
acc2 = lambda mb, nb: ACC2 + (mb * 8 + nb) * 4
acca = lambda mb, nb: ACCA + (mb * 4 + nb) * 4
XR, B2R, XT = 68, 76, 84
vT, vTO = 14, 22
vA0, vA1 = 26, 27
vBh0, vBh1, vBo, vO, vX1, vPO = 7, 8, 9, 10, 11, 12
D2 = 6; NH = 28; NS2 = 44
RING2 = 65536

def k2_setup(a, t):
    a(f"""
    s_lshr_b32 s70, s36, 2            ; g
    s_and_b32 s71, s36, 3             ; mw
    s_and_b32 s74, s46, 1             ; kh
    s_lshr_b32 s48, s46, 1            ; xq
    s_and_b32 s72, s48, 1
    s_lshl_b32 s72, s72, 3
    s_and_b32 s49, s47, 7
    s_add_u32 s72, s72, s49           ; mt
    s_lshr_b32 s73, s48, 1
    s_lshl_b32 s73, s73, 2
    s_lshr_b32 s49, s47, 3
    s_add_u32 s73, s73, s49           ; nt2
    s_lshl_b32 s75, s74, 1
    s_add_u32 s75, s75, s70           ; q = 2kh+g
    v_lshrrev_b32 v{t}, 4, v{vL}
    s_lshl_b32 s48, s71, 3
    v_add_u32 v{t+1}, s48, v{t}
    v_lshlrev_b32 v{vBh0}, 11, v{t+1}
    v_lshlrev_b32 v{t}, 1, v{t}
    v_and_b32 v{t+1}, 15, v{vL}
    v_xor_b32 v{t}, v{t}, v{t+1}
    v_lshl_add_u32 v{vBh0}, v{t}, 4, v{vBh0}
    s_lshl_b32 s48, s73, 8
    v_add_u32 v{vBh0}, s48, v{vBh0}
    v_xor_b32 v{vBh1}, 128, v{vBh0}
    v_add_u32 v{vBh1}, 8192, v{vBh1}
    s_mov_b32 s80, s14
    s_mov_b32 s81, s15
    s_mov_b32 s82, {3584*2048}
    s_mov_b32 s83, 0x20000
    s_mul_i32 s85, s75, {28*65536}
    s_sub_u32 s85, s85, 65536          ; pre-increment
    s_mul_i32 s87, s70, {D2*8192}
    s_add_u32 s87, s87, {RING2}
    s_lshl_b32 s86, s71, 11
    s_add_u32 s86, s86, s87
    """)
def k2_setup2(a, t):
    a(f"""
    ; A addresses
    s_lshl_b32 s48, s70, 10
    v_xor_b32 v{vA0}, s48, v{vA}
    v_xor_b32 v{vA1}, 0x400, v{vA0}
    s_lshl_b32 s88, s72, 2
    s_add_u32 s88, s88, s71
    s_mul_i32 s48, s88, 294912
    {{
    s_add_u32 s48, s48, {A2_OFF}
    s_add_u32 s76, s8, s48
    s_addc_u32 s77, s9, 0
    }}
    s_mov_b32 s78, 294912
    s_mov_b32 s79, 0x20000
    s_mul_i32 s84, s75, {28*2048}
    s_add_u32 s84, s84, {32*2048}
    v_lshrrev_b32 v{t}, 2, v{vL}
    v_and_b32 v{t+1}, 3, v{vL}
    v_lshlrev_b32 v{t+1}, 3, v{t+1}
    v_add_u32 v{t+1}, s87, v{t+1}
    v_lshl_add_u32 v{t+2}, v{t}, 8, v{t+1}
    v_and_b32 v{t+3}, 7, v{t}
    v_lshlrev_b32 v{t+3}, 5, v{t+3}
    s_lshl_b32 s48, s74, 7
    v_xor_b32 v{t+3}, s48, v{t+3}
    """)
    for nb in range(8):
        a(f"v_xor_b32 v{vT+nb}, {nb*32}, v{t+3}")
        a(f"v_add_u32 v{vT+nb}, v{vT+nb}, v{t+2}")
    a(f"""
    v_lshl_add_u32 v{t+2}, v{t}, 7, v{t+1}
    v_bfe_u32 v{t+3}, v{vL}, 3, 2
    v_lshlrev_b32 v{t+3}, 5, v{t+3}
    """)
    for nb in range(4):
        a(f"v_xor_b32 v{vTO+nb}, {nb*32}, v{t+3}")
        a(f"v_add_u32 v{vTO+nb}, v{vTO+nb}, v{t+2}")
    a(f"""
    v_lshrrev_b32 v{t}, 3, v{vL}
    s_lshl_b32 s48, s71, 3
    v_add_u32 v{t}, s48, v{t}
    v_lshlrev_b32 v{vBo}, 11, v{t}
    v_bfe_u32 v{t}, v{vL}, 4, 2
    v_lshlrev_b32 v{t}, 1, v{t}
    v_and_b32 v{t+1}, 7, v{vL}
    v_xor_b32 v{t}, v{t}, v{t+1}
    v_lshl_add_u32 v{vBo}, v{t}, 4, v{vBo}
    s_lshl_b32 s89, s73, 8
    s_lshl_b32 s48, s74, 7
    s_add_u32 s89, s89, s48
    v_add_u32 v{vBo}, s89, v{vBo}
    v_and_b32 v{vPO}, 31, v{vL}
    v_lshlrev_b32 v{vPO}, 2, v{vPO}
    """)

def k2_loadB(u):
    sl = u % D2
    if u < NH:
        return [f"""{{
        s_add_u32 m0, s86, {sl*8192}
        s_add_u32 s85, s85, 65536
        buffer_load_dwordx4 v{vBh0}, s[80:83], s85 offen lds ;@b{u}
        }}""", f"""{{
        s_add_u32 m0, s86, {sl*8192+1024}
        s_nop 0
        buffer_load_dwordx4 v{vBh1}, s[80:83], s85 offen lds ;@b{u}
        }}"""]
    pre = ""
    if u == NH:
        pre = f"""s_mov_b32 s80, s60
        s_mov_b32 s81, s61
        s_mov_b32 s82, {1024*2048}
        s_lshl_b32 s85, s70, 20
        s_sub_u32 s85, s85, 65536
        s_lshl_b32 s86, s71, 10
        s_add_u32 s86, s86, s87"""
    return [f"""{{
        {pre}
        s_add_u32 m0, s86, {sl*8192}
        s_add_u32 s85, s85, 65536
        buffer_load_dwordx4 v{vBo}, s[80:83], s85 offen lds ;@b{u}
        }}"""]
def k2_loadA(u, sc):
    sl = u % D2; o = (u & 1) * 2048
    g0 = f"buffer_load_dwordx4 v[{AR2+sl*8}:{AR2+sl*8+3}], v{vA0}, s[76:79], s84 offen offset:{o}{sc} ;@a{u}"
    g1 = f"buffer_load_dwordx4 v[{AR2+sl*8+4}:{AR2+sl*8+7}], v{vA1}, s[76:79], s84 offen offset:{o}{sc} ;@a{u}"
    if u == NH: g0 = "s_lshl_b32 s84, s70, 15\n" + g0
    if u & 1: g1 += "\ns_add_u32 s84, s84, 4096"
    return [g0, g1]
def k2_reads(nb, u):
    sl = u % D2
    if u < NH: reg = vT + nb; o1 = 4096
    else: reg = vTO + nb; o1 = 2048
    return f"""ds_read_b64_tr_b16 v[{BF2+nb*4}:{BF2+nb*4+1}], v{reg} offset:{sl*8192} ;@r{u}_{nb}
    ds_read_b64_tr_b16 v[{BF2+nb*4+2}:{BF2+nb*4+3}], v{reg} offset:{sl*8192+o1} ;@r{u}_{nb}"""

def k2_loop(a, pf, nBpre, nApre, sc, K0=100):
    nb_, na_ = nBpre, nApre
    a("WAIT b0")
    a("s_barrier")
    for nb in range(8): a(k2_reads(nb, 0))
    pf.stamp('first2')
    for s in range(NS2):
        if s == NH: pf.stamp('phaseH')
        a.hook(f"k2pre{s}")
        a(f"WAIT a{s}" + (f" b{s+1}" if s + 1 < NS2 else ""))
        a("s_barrier")
        a.hook(f"k2post{s}")
        lg = []; k = 0
        while nb_ < NS2 and nb_ <= s + D2 - 1 and k < 2: lg += k2_loadB(nb_); nb_ += 1; k += 1
        k = 0
        while na_ < NS2 and na_ <= s + D2 - 1 and k < 2: lg += k2_loadA(na_, sc); na_ += 1; k += 1
        NB = 8 if s < NH else 4
        NBn = 8 if s + 1 < NH else 4
        pos = {}
        for i, g in enumerate(lg): pos.setdefault((i * NB) // max(len(lg), NB // 2 + 1), []).append(g)
        for nb in range(NB):
            if NB == 8:
                if nb == 0: a(f"WAIT r{s}_3")
                if nb == 4: a(f"WAIT r{s}_7")
            else:
                if nb % 2 == 0: a(f"WAIT r{s}_{nb+1}")
            for mb in range(2):
                ar = AR2 + (s % D2) * 8 + mb * 4
                r = acc2(mb, nb) if s < NH else acca(mb, nb)
                c = '0' if s in (0, NH) else f"v[{r}:{r+3}]"
                a(f"v_mfma_f32_16x16x32_bf16 v[{r}:{r+3}], v[{BF2+nb*4}:{BF2+nb*4+3}], v[{ar}:{ar+3}], {c}")
                a.slot(K0 + s + (nb * 2 + mb) / (2.0 * NB))
            if s + 1 < NS2 and nb < NBn: a(k2_reads(nb, s + 1))
            for g in pos.get(nb, []): a(g)

def k2_xload(a, t):
    a(srd(32, 's62', 's63', 4 << 20))
    a(srd(52, 's64', 's65', 2048))
    a(f"""
    s_lshl_b32 s48, s88, 5
    s_lshl_b32 s49, s70, 4
    s_add_u32 s48, s48, s49
    v_and_b32 v{t}, 15, v{vL}
    v_add_u32 v{t}, s48, v{t}
    v_lshlrev_b32 v{t}, 11, v{t}
    v_add_u32 v{t}, s89, v{t}
    v_lshrrev_b32 v{t+1}, 4, v{vL}
    v_lshl_add_u32 v{vO}, v{t+1}, 4, v{t}
    v_lshl_add_u32 v{t}, v{t+1}, 3, v{t}
    v_lshlrev_b32 v{t+1}, 3, v{t+1}
    """)
    for nb in range(4):
        a(f"buffer_load_dwordx2 v[{XR+2*nb}:{XR+2*nb+1}], v{t}, s[32:35], 0 offen offset:{32*nb} ;@XL")
        a(f"buffer_load_dwordx2 v[{B2R+2*nb}:{B2R+2*nb+1}], v{t+1}, s[52:55], s89 offen offset:{32*nb} ;@XL")
    a(srd(32, 's66', 's67', 4 << 20))

def k2_exchange(a, K0=100):
    s0 = K0 + NH
    sd = Side()
    sd(f"""
    s_lshl_b32 s48, s71, 14
    s_lshl_b32 s49, s70, 13
    s_add_u32 s48, s48, s49
    v_add_u32 v{vX1}, s48, v{vA}
    v_xor_b32 v{XT}, 0x2000, v{vX1}
    GAP 3
    """)
    for nb in range(8):
        sd(f"ds_write_b128 v{XT}, v[{acc2(1,nb)}:{acc2(1,nb)+3}] offset:{nb*1024} ;@XW")
    a.place(sd, s0, s0 + 1)
    a.at_hook(f"k2pre{NH+1}", "WAIT XW")
    sd = Side()
    P = acc2(1, 0)
    order = [4, 5, 6, 7, 0, 1, 2, 3]
    for nb in order:
        sd(f"ds_read_b128 v[{P+nb*4}:{P+nb*4+3}], v{vX1} offset:{nb*1024} ;@XRD{nb}")
    sd(f"""
    s_lshl_b32 s48, s72, 3
    s_add_u32 s48, s48, s73
    s_lshl_b32 s48, s48, 1                   ; tile*2
    s_add_u32 s49, s48, s74
    s_xor_b32 s48, s49, 1
    s_lshl_b32 s48, s48, 3
    s_add_u32 s48, s48, s36
    s_lshl_b32 s49, s49, 3
    s_add_u32 s49, s49, s36
    s_lshl_b32 s90, s48, 12
    s_add_u32 s90, s90, {XCH_OFF}
    s_lshl_b32 s91, s49, 12
    s_add_u32 s91, s91, {XCH_OFF}
    s_lshl_b32 s92, s48, 2
    s_add_u32 s92, s92, {XF_OFF}
    s_lshl_b32 s93, s49, 2
    s_add_u32 s93, s93, {XF_OFF}
    """)
    for nb in order:
        sd(f"WAIT XRD{nb}")
        for k in range(4): sd(f"v_add_f32 v{acc2(0,nb)+k}, v{acc2(0,nb)+k}, v{P+nb*4+k}")
        if nb >= 4:
            sd(f"buffer_store_dwordx4 v[{acc2(0,nb)}:{acc2(0,nb)+3}], v{vA}, s[28:31], s90 offen offset:{(nb-4)*1024} sc1 ;@XS")
    a.place(sd, s0 + 1, s0 + 3)
    sd = Side()
    sd(f"""{{
    WAIT XS
    buffer_store_dword v{vONE}, v{vSEL}, s[28:31], s92 offen sc1
    }}
    v_mov_b32 v{XT}, 0
    """)
    a.place(sd, s0 + C.XF, s0 + C.XF + 0.5)
    sd = Side(); poll_issue(sd, XT + 1, XT, 93, 'XP'); a.place(sd, s0 + C.XP, s0 + C.XP + 0.5)
    sd = Side(); poll_check(sd, XT + 1, XT, 93, 'XP')
    for nb in range(4):
        sd(f"buffer_load_dwordx4 v[{P+nb*4}:{P+nb*4+3}], v{vA}, s[28:31], s91 offen offset:{nb*1024} sc1 ;@XG")
    a.place(sd, s0 + C.XC, s0 + C.XC + 1)

def k2_final(a, pf):
    t = XT
    P = acc2(1, 0)
    a(f"v_xor_b32 v{t}, 0x2000, v{vX1}")
    a("s_nop 4")
    for nb in range(4):
        a(f"ds_write_b128 v{t}, v[{acca(1,nb)}:{acca(1,nb)+3}] offset:{nb*1024} ;@FW")
    a("WAIT XG XL")
    for nb in range(4):
        r = acc2(0, nb)
        for h in range(2): a(f"v_pk_add_f32 v[{r+2*h}:{r+2*h+1}], v[{r+2*h}:{r+2*h+1}], v[{P+nb*4+2*h}:{P+nb*4+2*h+1}]")
    a("WAIT FW")
    a("s_barrier")
    Q = acca(1, 0)
    for nb in range(4):
        a(f"ds_read_b128 v[{Q+nb*4}:{Q+nb*4+3}], v{vX1} offset:{nb*1024} ;@FR{nb}")
    def unpack(dst, src):
        a(f"v_lshlrev_b32 v{dst}, 16, v{src}")
        a(f"v_and_b32 v{dst+1}, s57, v{src}")
        a(f"v_lshlrev_b32 v{dst+2}, 16, v{src+1}")
        a(f"v_and_b32 v{dst+3}, s57, v{src+1}")
    def add4(dst, x, y):
        a(f"v_pk_add_f32 v[{dst}:{dst+1}], v[{x}:{x+1}], v[{y}:{y+1}]")
        a(f"v_pk_add_f32 v[{dst+2}:{dst+3}], v[{x+2}:{x+3}], v[{y+2}:{y+3}]")
    def rnd(r):
        for k in range(4): a(f"v_cvt_pk_bf16_f32 v{r+k}, 0, v{r+k}")
    for nb in range(4):
        r = acc2(0, nb); u = P + nb * 4
        rnd(r); unpack(u, B2R + 2 * nb); add4(r, r, u); rnd(r)
        unpack(u, XR + 2 * nb)
    R = BF2
    for nb in range(4):
        r = acca(0, nb); u = P + nb * 4
        a(f"WAIT FR{nb}")
        add4(r, r, Q + nb * 4); rnd(r); add4(r, r, u); rnd(r); add4(r, r, acc2(0, nb))
        a(f"v_cvt_pk_bf16_f32 v{R+2*nb}, v{r}, v{r+1}")
        a(f"v_cvt_pk_bf16_f32 v{R+2*nb+1}, v{r+2}, v{r+3}")
        if nb & 1:
            p = nb // 2; r = R + 4 * p
            a(f"v_permlane32_swap_b32 v{r}, v{r+2}")
            a(f"v_permlane32_swap_b32 v{r+1}, v{r+3}")
            a(f"v_permlane16_swap_b32 v{r}, v{r+2}")
            a(f"v_permlane16_swap_b32 v{r+1}, v{r+3}")
            a(f"buffer_store_dwordx4 v[{r}:{r+3}], v{vO}, s[32:35], 0 offen offset:{64*p}")

def gen_k2():
    a = S()
    pf = Prof(a, vPROF, 2)
    a("""
    s_cmp_ge_u32 s2, 256
    s_cbranch_scc1 L2_end
    """)
    pf.stamp('start')
    a(f"""
    s_load_dwordx2 s[8:9], s[0:1], 88      ; ws
    s_load_dwordx2 s[14:15], s[0:1], 56    ; w2
    s_load_dwordx2 s[60:61], s[0:1], 24    ; wo
    s_load_dwordx2 s[62:63], s[0:1], 0     ; x
    s_load_dwordx2 s[64:65], s[0:1], 64    ; b2
    s_load_dwordx2 s[66:67], s[0:1], 72    ; out
    v_lshrrev_b32 v36, 6, v0
    v_and_b32 v{vL}, 63, v0
    v_readfirstlane_b32 s36, v36           ; wave
    s_and_b32 s46, s2, 7                   ; x
    s_lshr_b32 s47, s2, 3                  ; j
    v_lshlrev_b32 v{vA}, 4, v{vL}
    s_mov_b32 s57, 0xffff0000
    v_mov_b32 v{vONE}, 1
    v_mov_b32 v{vSEL}, {OOB}
    v_cmp_eq_u32 vcc, 0, v{vL}
    v_cndmask_b32 v{vSEL}, v{vSEL}, 0, vcc
    s_waitcnt lgkmcnt(0)
    """)
    a(srd(28, 's8', 's9', WS_RANGE))
    k2_setup(a, 36); k2_setup2(a, 36)
    pf.stamp('setup')
    for u in range(3):
        for g in k2_loadB(u) + k2_loadA(u, ''): a(g)
    pf.stamp('issued')
    k2_loop(a, pf, 3, 3, '')
    sd = Side(); k2_xload(sd, XT + 2); a.place(sd, 100 + NH + 4, 100 + NH + 6)
    k2_exchange(a)
    pf.stamp('phaseO')
    k2_final(a, pf)
    if C.PROF:
        pf.stamp('final')
        a("s_waitcnt vmcnt(0)")
        pf.stamp('end')
        pf.flush(28, 12, 36, 8)
    a("L2_end:")
    a("s_endpgm")
    return a, 256, 100, LDS_MAIN
C.XF = 7; C.XP = 10; C.XC = 12
C.OLDK2 = 0

HEADER = """; parallel_sum( hedgehog linear attention , squared-relu MLP ) on layernorm(x), + residual
; generated by work2/gen2.py (own generator)."""

def build(path):
    sys.path.insert(0, 'work')
    import gen as old
    ks = []
    k0, v0, s0 = gen_k0(); ks.append(("ln_kernel", finish(k0)[0], v0, s0, 256, 0))
    k1, v1, s1, l1 = gen_k1(); b, rep = finish(k1); ks.append(("g1_kernel", b, v1, s1, 512, l1))
    if C.OLDK2:
        k2, v2, s2, l2 = old.gen_k2(8)
        k2 = [b.replace(' NEG', ' neg_lo:[0,1] neg_hi:[0,1]') for b in fix_hazards(k2)]
    else:
        k2, v2, s2, l2 = gen_k2(); k2 = finish(k2)[0]
    ks.append(("g2_kernel", k2, v2, s2, 512, l2))
    t = [HEADER]
    for n, b, v, s, thr, l in ks: t.append(f"; @launch kernel={n} grid=(256,1,1) block=({thr},1,1) lds={l}")
    t += ['.amdgcn_target "amdgcn-amd-amdhsa--gfx950"', '.text']
    for n, b, v, s, thr, l in ks: t += kernel_text(n, b, 0, 0)
    t += ['.section .rodata,"a"']
    for n, b, v, s, thr, l in ks: t += kd_text(n, v, s)
    open(path, 'w').write('\n'.join(t) + '\n')
    if C.PROF:
        import json; json.dump(PROFNAMES, open(path + '.prof.json', 'w'))

if __name__ == "__main__":
    out = None
    for x in sys.argv[1:]:
        if x.startswith("--"):
            k, _, v = x[2:].partition("=")
            if k == 'SC': v = ' ' + v if v else ''
            elif v == '': v = True
            else: v = int(v)
            setattr(C, k, v)
        else: out = x
    build(out)
```

```python
import sys
from fw import *

XN_OFF = 0
A2_OFF = 4 << 20
KVP_OFF = 24 << 20
FLAG_OFF = 28 << 20
HF_OFF = FLAG_OFF + 8192
OF_OFF = FLAG_OFF + 16384
XF_OFF = FLAG_OFF + 24576
FLAG_BYTES = 32768
XCH_OFF = 32 << 20
WS_RANGE = 48 << 20
PROF_OFF = 44 << 20
LOG2E = 0x3fb8aa3b
OOB = 0x7f000000

class Cfg:
    PROF = False
    U0 = 40
    USW = 99
    BURST = 26
    WB = 1
    WBG = 16
    WBS = 4
    BN = 1
    BS = 2
    KMAP = 1
    ASC = 1
    W2PF = 1
    PD = 16
    BAR2 = True
C = Cfg()

class Prof:
    def __init__(self, a, vreg, kidx, st=96):
        self.a = a; self.v = vreg; self.n = 0; self.k = kidx; self.st = st; self.names = []
    def stamp(self, name=''):
        if not C.PROF: return
        st = self.st
        self.a(f"""s_waitcnt lgkmcnt(0)
        s_memtime s[{st}:{st+1}]
        s_memrealtime s[{st+2}:{st+3}]
        s_waitcnt lgkmcnt(0)
        v_writelane_b32 v{self.v}, s{st}, {2*self.n}
        v_writelane_b32 v{self.v}, s{st+2}, {2*self.n+1}""")
        self.n += 1; self.names.append(name)
        assert self.n <= 32
    def flush(self, srd, vtmp, swave, nw):
        if not C.PROF: return
        st = self.st
        self.a(f"""s_mul_i32 s{st}, s2, {nw}
        s_add_u32 s{st}, s{st}, s{swave}
        s_lshl_b32 s{st}, s{st}, 8
        s_add_u32 s{st}, s{st}, {PROF_OFF + self.k * (1 << 20)}
        v_lshlrev_b32 v{vtmp}, 2, v1
        buffer_store_dword v{self.v}, v{vtmp}, s[{srd}:{srd+3}], s{st} offen""")
        PROFNAMES[self.k] = (nw, self.names)
PROFNAMES = {}

def srd(a, base_lo, base_hi, nrec):
    return f"""s_mov_b32 s{a}, {base_lo}
s_mov_b32 s{a+1}, {base_hi}
s_mov_b32 s{a+2}, {nrec}
s_mov_b32 s{a+3}, 0x20000"""

def gen_k0():
    a = S()
    pf = Prof(a, 87, 0, 48)
    a("""
    s_cmp_ge_u32 s2, 256
    s_cbranch_scc1 L0_end
    """)
    pf.stamp('start')
    a("""
    s_load_dwordx2 s[4:5], s[0:1], 0
    s_load_dwordx2 s[6:7], s[0:1], 88
    s_load_dwordx2 s[24:25], s[0:1], 8
    s_load_dwordx2 s[28:29], s[0:1], 40
    s_load_dwordx2 s[32:33], s[0:1], 16
    s_load_dwordx2 s[36:37], s[0:1], 48
    s_load_dwordx2 s[44:45], s[0:1], 64
    v_and_b32 v1, 63, v0              ; lane
    v_lshrrev_b32 v2, 6, v0           ; wave
    v_bfe_u32 v3, v1, 4, 1            ; r
    v_and_b32 v4, 15, v1              ; j
    v_lshrrev_b32 v5, 5, v1           ; hi
    s_lshl_b32 s3, s2, 3
    v_lshl_add_u32 v6, v2, 1, v3
    v_add_u32 v6, s3, v6              ; m
    v_lshrrev_b32 v7, 1, v4           ; j>>1
    v_and_b32 v60, 1, v4              ; j&1
    v_lshlrev_b32 v61, 2, v7
    v_lshl_add_u32 v61, v5, 1, v61
    v_add_u32 v61, v61, v60           ; piece
    v_lshlrev_b32 v61, 4, v61
    v_lshl_add_u32 v61, v6, 11, v61   ; voff_in
    s_mov_b32 s10, 4194304
    s_mov_b32 s11, 0x20000
    s_waitcnt lgkmcnt(0)
    s_mov_b32 s8, s4
    s_mov_b32 s9, s5
    """)
    for i in range(4):
        a(f"buffer_load_dwordx4 v[{8+4*i}:{11+4*i}], v61, s[8:11], 0 offen offset:{512*i} ;@X")
    a(srd(12, 's6', 's7', WS_RANGE))
    if C.PD:
        a(f"""
        s_and_b32 s21, s2, 7              ; x
        s_lshr_b32 s22, s2, 3             ; j
        v_lshrrev_b32 v80, 3, v0          ; stage
        v_and_b32 v81, 7, v0              ; l
        v_lshl_add_u32 v82, v80, 5, s22   ; row
        v_mul_u32_u24 v83, 6144, v82
        v_lshrrev_b32 v84, 1, v81
        v_lshl_add_u32 v83, v84, 11, v83
        v_and_b32 v84, 1, v81
        v_lshl_add_u32 v83, v84, 7, v83
        s_lshl_b32 s23, s21, 8
        v_add_u32 v83, s23, v83
        v_mul_u32_u24 v84, 7168, v82
        s_mul_i32 s23, s21, 768
        v_lshl_add_u32 v85, v81, 7, s23
        s_lshl_b32 s23, s21, 7
        s_add_u32 s23, s23, 6144
        v_mov_b32 v86, s23
        v_cmp_gt_u32 vcc, 6, v81
        v_cndmask_b32 v85, v86, v85, vcc
        v_add_u32 v84, v84, v85           ; w1 offset
        v_mov_b32 v86, {OOB}
        v_cndmask_b32 v83, v86, v83, vcc
        v_cmp_gt_u32 vcc, 7, v81
        v_cndmask_b32 v84, v86, v84, vcc
        v_cmp_gt_u32 vcc, {C.PD}, v80
        v_cndmask_b32 v83, v86, v83, vcc
        v_cndmask_b32 v84, v86, v84, vcc
        s_mov_b32 s26, 6291456
        s_mov_b32 s27, 0x20000
        s_mov_b32 s30, 7340032
        s_mov_b32 s31, 0x20000
        buffer_load_dword v85, v83, s[24:27], 0 offen
        buffer_load_dword v86, v84, s[28:31], 0 offen
        s_mov_b32 s34, 65536
        s_mov_b32 s35, 0x20000
        s_mov_b32 s38, 7168
        s_mov_b32 s39, 0x20000
        s_mov_b32 s46, 2048
        s_mov_b32 s47, 0x20000
        v_lshlrev_b32 v80, 7, v0
        s_lshl_b32 s23, s2, 15
        buffer_load_dword v81, v80, s[32:35], s23 offen
        buffer_load_dword v82, v80, s[36:39], s23 offen
        buffer_load_dword v83, v80, s[44:47], s23 offen
        """)
    a(f"""
    v_lshl_add_u32 v62, v60, 1, v5    ; g
    v_lshlrev_b32 v62, 4, v62
    v_and_b32 v63, 15, v6
    v_add_u32 v62, v62, v63
    v_lshlrev_b32 v62, 4, v62         ; (g*16 + m&15)*16
    v_lshl_add_u32 v62, v7, 11, v62   ; + (j>>1)*2048
    v_bfe_u32 v63, v6, 4, 1
    v_lshl_add_u32 v62, v63, 10, v62  ; + mb*1024
    v_lshrrev_b32 v63, 5, v6
    v_lshl_add_u32 v62, v63, 16, v62  ; + m32blk*65536
    v_mov_b32 v56, 0
    v_mov_b32 v57, 0
    v_mov_b32 v58, 0
    v_mov_b32 v59, 0
    v_lshlrev_b32 v2, 4, v0
    s_lshl_b32 s16, s2, 12
    s_add_u32 s16, s16, {FLAG_OFF}
    s_cmp_lt_u32 s2, {FLAG_BYTES // 4096}
    s_cselect_b32 s16, s16, {OOB}
    buffer_store_dwordx4 v[56:59], v2, s[12:15], s16 offen
    s_mov_b32 s17, 0xffff0000
    s_mov_b32 s18, 16384
    s_mov_b32 s19, 32768
    s_mov_b32 s20, 49152
    WAIT X
    """)
    pf.stamp('xloaded')
    F = 24
    for k in range(16):
        a(f"v_lshlrev_b32 v{F+2*k}, 16, v{8+k}")
        a(f"v_and_b32 v{F+2*k+1}, s17, v{8+k}")
    def tree(src):
        for k in range(8):
            a(f"v_pk_add_f32 v[{8+2*k}:{9+2*k}], v[{src+4*k}:{src+4*k+1}], v[{src+4*k+2}:{src+4*k+3}]")
        n = 8
        while n > 1:
            for k in range(n // 2):
                a(f"v_pk_add_f32 v[{8+2*k}:{9+2*k}], v[{8+4*k}:{9+4*k}], v[{8+4*k+2}:{8+4*k+3}]")
            n //= 2
        a("v_add_f32 v56, v8, v9")
    def xlane():
        for r in (8, 4, 2, 1):
            a(f"v_add_f32 v56, v56, v56 row_ror:{r}")
        a("v_mov_b32 v57, v56")
        a("v_permlane32_swap_b32 v56, v57")
        a("v_add_f32 v56, v56, v57")
    tree(F); xlane()
    a("v_mul_f32 v58, 0x3a800000, v56")
    a("v_mov_b32 v59, v58")
    for k in range(16):
        a(f"v_pk_add_f32 v[{8+2*(k%8)}:{9+2*(k%8)}], v[{F+2*k}:{F+2*k+1}], v[58:59] NEG")
        if k < 8:
            a(f"v_pk_mul_f32 v[{64+2*k}:{65+2*k}], v[{8+2*k}:{9+2*k}], v[{8+2*k}:{9+2*k}]")
        else:
            kk = k - 8
            a(f"v_pk_fma_f32 v[{64+2*kk}:{65+2*kk}], v[{8+2*kk}:{9+2*kk}], v[{8+2*kk}:{9+2*kk}], v[{64+2*kk}:{65+2*kk}]")
    n = 8
    while n > 1:
        for k in range(n // 2):
            a(f"v_pk_add_f32 v[{64+2*k}:{65+2*k}], v[{64+4*k}:{65+4*k}], v[{64+4*k+2}:{64+4*k+3}]")
        n //= 2
    a("v_add_f32 v56, v64, v65")
    xlane()
    a("""
    v_mul_f32 v56, 0x3a800000, v56        ; var
    v_cvt_pk_bf16_f32 v56, 0, v56         ; var_bf
    v_cvt_pk_bf16_f32 v58, 0, v58         ; mean_bf
    v_add_f32 v56, 0x3727c5ac, v56        ; + 1e-5
    v_cvt_pk_bf16_f32 v56, 0, v56
    v_sqrt_f32 v56, v56
    v_cvt_pk_bf16_f32 v56, 0, v56
    v_rcp_f32 v56, v56
    v_mov_b32 v59, v58
    v_mov_b32 v57, v56
    """)
    for k in range(16):
        a(f"v_pk_add_f32 v[{F+2*k}:{F+2*k+1}], v[{F+2*k}:{F+2*k+1}], v[58:59] NEG")
    for k in range(32):
        a(f"v_cvt_pk_bf16_f32 v{F+k}, 0, v{F+k}")
    so = ['0', 's18', 's19', 's20']
    for i in range(4):
        for k in range(4 * i, 4 * i + 4):
            a(f"v_pk_mul_f32 v[{F+2*k}:{F+2*k+1}], v[{F+2*k}:{F+2*k+1}], v[56:57]")
        for k in range(4 * i, 4 * i + 4):
            a(f"v_cvt_pk_bf16_f32 v{8+k}, v{F+2*k}, v{F+2*k+1}")
        if i > 0:
            b = 8 + 4 * (i - 1)
            a(f"v_permlane32_swap_b32 v{b}, v{b+2}")
            a(f"v_permlane32_swap_b32 v{b+1}, v{b+3}")
            a(f"buffer_store_dwordx4 v[{b}:{b+3}], v62, s[12:15], {so[i-1]} offen")
    b = 20
    a(f"v_permlane32_swap_b32 v{b}, v{b+2}")
    a(f"v_permlane32_swap_b32 v{b+1}, v{b+3}")
    a(f"buffer_store_dwordx4 v[{b}:{b+3}], v62, s[12:15], {so[3]} offen")
    if C.PROF:
        pf.stamp('stored')
        a("s_waitcnt vmcnt(0)")
        pf.stamp('end')
        a("v_lshrrev_b32 v2, 6, v0")
        a("v_readfirstlane_b32 s3, v2")
        pf.flush(12, 2, 3, 4)
    a("L0_end:")
    a("s_endpgm")
    return a, 88, 56

vL, vA, vD1, vD2 = 1, 2, 3, 4
vQe, vQo, vH = 5, 6, 7
vDUM, vPROF = 12, 13
B1, WP = 14, 28
AR, BF, ACC = 36, 100, 152
acc = lambda mb, nb: ACC + (mb * 13 + nb) * 4
SLOT1 = 14336
WPHI = 161792
LDS_MAIN = 163840
KFQ, PK, E, ST, TT = 36, 52, 68, 100, 108
PH = PK
vTW, vTR, vONE, vSEL = 7, 8, 5, 6
LAB = [0]
def lab(p):
    LAB[0] += 1
    return f"L{p}{LAB[0]}"

def k1_setup(a, pf):
    t = 36
    for n in range(448):
        assert (n * 5462) >> 16 == n // 12 and (n * 4682) >> 16 == n // 14
    a(f"""
    s_load_dwordx2 s[8:9], s[0:1], 88      ; ws
    s_load_dwordx2 s[4:5], s[0:1], 8       ; wqkv
    s_load_dwordx2 s[6:7], s[0:1], 40      ; w1
    s_load_dwordx2 s[10:11], s[0:1], 16    ; wphi
    s_load_dwordx2 s[12:13], s[0:1], 48    ; b1
    s_load_dwordx2 s[14:15], s[0:1], 56    ; w2
    s_load_dwordx2 s[60:61], s[0:1], 24    ; wo
    s_load_dwordx2 s[62:63], s[0:1], 0     ; x
    s_load_dwordx2 s[64:65], s[0:1], 64    ; b2
    s_load_dwordx2 s[66:67], s[0:1], 72    ; out
    v_lshrrev_b32 v{t}, 6, v0
    v_and_b32 v{vL}, 63, v0
    v_readfirstlane_b32 s36, v{t}          ; wave
    s_and_b32 s46, s2, 7                   ; x
    s_lshr_b32 s47, s2, 3                  ; j
    s_lshl_b32 s37, s46, 2
    s_lshr_b32 s48, s47, 3
    s_add_u32 s37, s37, s48                ; head
    s_and_b32 s38, s47, 7                  ; mtile
    v_lshlrev_b32 v{vA}, 4, v{vL}
    s_lshl_b32 s39, s38, 3
    s_add_u32 s39, s39, s36                ; m32blk
    s_lshl_b32 s40, s36, 10                ; m0 base 1
    ; ---- dma voffsets : Bq formula with ci = 64*w + l
    s_lshl_b32 s48, s36, 6
    v_add_u32 v{t}, s48, v{vL}                 ; ci
    v_mul_u32_u24 v{t+1}, 5462, v{t}
    v_lshrrev_b32 v{t+1}, 16, v{t+1}        ; row
    v_mul_u32_u24 v{t+2}, 12, v{t+1}
    v_sub_u32 v{t+2}, v{t}, v{t+2}       ; pos
    v_bfe_u32 v{t+3}, v{t+1}, 2, 1
    v_lshlrev_b32 v{t+3}, 1, v{t+3}
    v_xor_b32 v{t+2}, v{t+2}, v{t+3}     ; cc
    v_mul_u32_u24 v{vD1}, 6144, v{t+1}
    v_lshrrev_b32 v{t+3}, 2, v{t+2}
    v_lshl_add_u32 v{vD1}, v{t+3}, 11, v{vD1}
    v_and_b32 v{t+3}, 3, v{t+2}
    v_lshl_add_u32 v{vD1}, v{t+3}, 4, v{vD1}
    s_lshl_b32 s48, s37, 6
    v_add_u32 v{vD1}, s48, v{vD1}
    """)
    def bh_off(dst, ci_s):
        a(f"""
        v_add_u32 v{t}, {ci_s}, v{vL}
        v_mul_u32_u24 v{t+1}, 4682, v{t}
        v_lshrrev_b32 v{t+1}, 16, v{t+1}        ; row
        v_mul_u32_u24 v{t+2}, 14, v{t+1}
        v_sub_u32 v{t+2}, v{t}, v{t+2}       ; cc
        v_mul_u32_u24 v{dst}, 7168, v{t+1}
        v_lshl_add_u32 v{dst}, v{t+2}, 4, v{dst}
        v_mov_b32 v{t+3}, s49
        v_mov_b32 v{t+4}, s50
        v_cmp_gt_u32 vcc, 12, v{t+2}
        v_cndmask_b32 v{t+3}, v{t+4}, v{t+3}, vcc
        v_add_u32 v{dst}, v{dst}, v{t+3}
        """)
    a(f"""
    s_mul_i32 s49, s37, 192
    s_lshl_b32 s50, s37, 5
    s_add_u32 s50, s50, {6144-192}
    s_lshl_b32 s48, s36, 6
    """)
    bh_off(vD2, 's48')
    a(f"""
    s_cmp_lt_u32 s36, 6
    s_cbranch_scc1 L1_dok
    v_mov_b32 v{vD1}, v{vD2}
    v_mov_b32 v{vD2}, {OOB}
    s_cmp_eq_u32 s36, 6
    s_cbranch_scc1 L1_dok
    s_add_u32 s48, s47, {32*C.PD}          ; row
    v_mov_b32 v{t+5}, {OOB}
    v_cmp_lt_u32 vcc, 5, v{vL}
    v_mov_b32 v{t+6}, 0
    v_cndmask_b32 v{t}, v{t+6}, 1, vcc     ; r = l/6
    v_mul_u32_u24 v{t+1}, 6, v{t}
    v_sub_u32 v{t+1}, v{vL}, v{t+1}        ; c
    v_lshl_add_u32 v{t}, v{t}, 5, s48      ; row
    v_mul_u32_u24 v{vD1}, 6144, v{t}
    v_lshrrev_b32 v{t+2}, 1, v{t+1}
    v_lshl_add_u32 v{vD1}, v{t+2}, 11, v{vD1}
    v_and_b32 v{t+2}, 1, v{t+1}
    v_lshl_add_u32 v{vD1}, v{t+2}, 7, v{vD1}
    s_lshl_b32 s50, s46, 8
    v_add_u32 v{vD1}, s50, v{vD1}
    v_cmp_gt_u32 vcc, 12, v{vL}
    s_nop 1
    v_cndmask_b32 v{vD1}, v{t+5}, v{vD1}, vcc
    v_cmp_lt_u32 vcc, 6, v{vL}
    s_nop 1
    v_cndmask_b32 v{t}, v{t+6}, 1, vcc     ; r = l/7
    v_mul_u32_u24 v{t+1}, 7, v{t}
    v_sub_u32 v{t+1}, v{vL}, v{t+1}        ; c
    v_lshl_add_u32 v{t}, v{t}, 5, s48      ; row
    v_mul_u32_u24 v{vD2}, 7168, v{t}
    s_mul_i32 s49, s46, 768
    v_lshl_add_u32 v{t+2}, v{t+1}, 7, s49
    s_lshl_b32 s49, s46, 7
    s_add_u32 s49, s49, 6144
    v_mov_b32 v{t+3}, s49
    v_cmp_gt_u32 vcc, 6, v{t+1}
    s_nop 1
    v_cndmask_b32 v{t+2}, v{t+3}, v{t+2}, vcc
    v_add_u32 v{vD2}, v{vD2}, v{t+2}
    v_cmp_gt_u32 vcc, 14, v{vL}
    s_nop 1
    v_cndmask_b32 v{vD2}, v{t+5}, v{vD2}, vcc
    L1_dok:
    ; ---- tr read addrs
    v_lshrrev_b32 v{t}, 2, v{vL}
    v_and_b32 v{t+1}, 3, v{vL}
    v_lshlrev_b32 v{t+1}, 3, v{t+1}         ; (l&3)*8
    v_mul_u32_u24 v{vH}, 224, v{t}
    v_add_u32 v{vH}, v{vH}, v{t+1}
    v_add_u32 v{vH}, 6144, v{vH}
    v_mul_u32_u24 v{vQe}, 192, v{t}
    v_add_u32 v{vQe}, v{vQe}, v{t+1}
    v_bfe_u32 v{t+2}, v{vL}, 4, 1
    v_lshlrev_b32 v{t+2}, 5, v{t+2}
    v_sub_u32 v{vQo}, v{vQe}, v{t+2}
    v_add_u32 v{vQe}, v{vQe}, v{t+2}
    v_add_u32 v{vQe+3}, {4*SLOT1}, v{vQe}
    v_add_u32 v{vQo+3}, {4*SLOT1}, v{vQo}
    v_add_u32 v{vH+3}, {4*SLOT1}, v{vH}
    v_lshl_add_u32 v11, v{t}, 6, v{t+1}
    v_add_u32 v11, {WPHI}, v11
    ; b1 offset (v12): g*8
    v_lshrrev_b32 v{vDUM}, 4, v{vL}
    v_lshlrev_b32 v{vDUM}, 3, v{vDUM}
    s_mov_b32 s18, 65536
    s_mov_b32 s19, 0x20000
    s_mov_b32 s23, 0x20000
    s_mov_b32 s27, 0x20000
    s_lshl_b32 s48, s39, 16
    s_mov_b32 s41, 0                       ; A soffset
    s_waitcnt lgkmcnt(0)
    s_add_u32 s16, s8, s48
    s_addc_u32 s17, s9, 0
    s_cmp_lg_u32 s36, 6
    s_cselect_b32 s20, s4, s6
    s_cselect_b32 s21, s5, s7
    s_mov_b32 s22, {1024*7168}
    s_cselect_b32 s22, {1024*6144}, s22
    s_mov_b32 s45, {32*7168}
    s_cselect_b32 s45, {32*6144}, s45
    s_cselect_b32 s68, s40, 12288          ; m0 base 1
    s_mov_b32 s24, s6
    s_mov_b32 s25, s7
    s_mov_b32 s26, {1024*7168}
    s_mov_b32 s51, {32*7168}
    s_add_u32 s44, s40, 6144               ; m0 base 2
    s_cmp_lt_u32 s36, 6
    s_cselect_b32 s44, s44, 13312
    s_sub_u32 s42, 0, s45
    s_sub_u32 s43, 0, s51
    s_cmp_eq_u32 s36, 7
    s_cselect_b32 s68, 13312, s68
    s_cselect_b32 s45, {64*6144}, s45
    s_cselect_b32 s51, {64*7168}, s51
    s_cselect_b32 s42, {(-(C.U0+1)*64*6144) & 0xffffffff}, s42
    s_cselect_b32 s43, {(-(C.U0+1)*64*7168) & 0xffffffff}, s43
    """)

def k1_switch():
    nops = 32 - C.USW
    n2 = -(-224 // nops); no = -(-64 // nops)
    if not C.W2PF: n2 = no = 0
    return f"""{{
    s_cmp_lg_u32 s36, 7
    s_cbranch_scc1 L1_nosw
    s_mov_b32 s20, s14
    s_mov_b32 s21, s15
    s_mov_b32 s22, {3584*2048}
    s_mov_b32 s45, {n2*128}
    s_mov_b32 s42, {(-n2*128) & 0xffffffff}
    s_mov_b32 s24, s60
    s_mov_b32 s25, s61
    s_mov_b32 s26, {1024*2048}
    s_mov_b32 s51, {no*128}
    s_mov_b32 s43, {(-no*128) & 0xffffffff}
    s_mul_i32 s48, s2, 28672
    s_lshl_b32 s49, s2, 13
    v_lshlrev_b32 v{vD1}, 7, v{vL}
    v_add_u32 v{vD2}, s49, v{vD1}
    v_add_u32 v{vD1}, s48, v{vD1}
    v_cmp_le_u32 vcc, {n2}, v{vL}
    v_mov_b32 v0, {OOB}
    s_nop 0
    v_cndmask_b32 v{vD1}, v{vD1}, v0, vcc
    v_cmp_le_u32 vcc, {no}, v{vL}
    s_nop 1
    v_cndmask_b32 v{vD2}, v{vD2}, v0, vcc
    L1_nosw:
    }}"""

def k1_loadB(u):
    sl = (u + 4) % 8
    return ([k1_switch()] if u == C.USW else []) + [f"""{{
        s_add_u32 m0, s68, {sl*SLOT1}
        s_add_u32 s42, s42, s45
        buffer_load_dwordx4 v{vD1}, s[20:23], s42 offen lds ;@B{u}
        }}""", f"""{{
        s_add_u32 m0, s44, {sl*SLOT1}
        s_add_u32 s43, s43, s51
        buffer_load_dwordx4 v{vD2}, s[24:27], s43 offen lds ;@B{u}
        }}"""]
def k1_loadA(u):
    sl = u % 8; o = (u & 1) * 2048
    g3 = f"buffer_load_dwordx4 v[{AR+sl*8}:{AR+sl*8+3}], v{vA}, s[16:19], s41 offen offset:{o} ;@A{u}"
    g4 = f"buffer_load_dwordx4 v[{AR+sl*8+4}:{AR+sl*8+7}], v{vA}, s[16:19], s41 offen offset:{o+1024} ;@A{u}"
    if u & 1: g4 += "\ns_add_u32 s41, s41, 4096"
    return [g3, g4]
def k1_reads(nb, u):
    sl = (u + 4) % 8
    up = 3 if sl >= 4 else 0
    base = (sl % 4) * SLOT1
    if nb < 6:
        reg = (vQo if nb & 1 else vQe) + up; o0 = base + 32 * nb; o1 = o0 + 3072
    else:
        reg = vH + up; o0 = base + 32 * (nb - 6); o1 = o0 + 3584
    return f"""ds_read_b64_tr_b16 v[{BF+nb*4}:{BF+nb*4+1}], v{reg} offset:{o0} ;@R{u}_{nb}
    ds_read_b64_tr_b16 v[{BF+nb*4+2}:{BF+nb*4+3}], v{reg} offset:{o1} ;@R{u}_{nb}"""

def k1_loop(a, pf, extra=None):
    NS = 32
    bars = [s for s in range(NS) if (s < 4 or not C.BAR2 or s % 2 == 0)]
    lastbar = lambda s: max(b for b in bars if b <= s)
    nextbar = lambda s: min([b for b in bars if b > s] + [NS])
    pre = [0, 1, 2]
    planB = {s: [] for s in range(NS)}; planA = {s: [] for s in range(NS)}
    nb_ = na_ = len(pre)
    for s in range(NS):
        k = 0
        while nb_ < NS and nb_ <= min(s + 6, lastbar(s) + 7) and k < 2: planB[s].append(nb_); nb_ += 1; k += 1
        k = 0
        while na_ < NS and na_ <= s + 7 and k < 2: planA[s].append(na_); na_ += 1; k += 1
    for u in pre:
        for g in k1_loadA(u) + k1_loadB(u) if u == 0 else k1_loadB(u) + k1_loadA(u): a(g)
    a(srd(28, 's8', 's9', WS_RANGE))
    a(srd(32, 's10', 's11', 65536))
    a(srd(52, 's12', 's13', 7168))
    a(f"""
    s_and_b32 s49, s36, 1
    s_lshl_b32 s49, s49, 10
    s_add_u32 s58, s49, {WPHI}
    s_lshl_b32 s59, s37, 11
    s_add_u32 s59, s59, s49
    s_mul_i32 s56, s37, 192
    s_lshl_b32 s57, s37, 5
    s_add_u32 s57, s57, 6144
    """)
    extra = dict(extra or {})
    extra.setdefault(8, []).append(f"""{{
    s_mov_b32 m0, s58
    s_nop 0
    buffer_load_dwordx4 v{vA}, s[32:35], s59 offen lds ;@WPH
    }}""")
    for i in range(6):
        extra.setdefault(9 + i // 2, []).append(f"buffer_load_dwordx2 v[{B1+2*i}:{B1+2*i+1}], v{vDUM}, s[52:55], s56 offen offset:{32*i} ;@BIAS")
    extra.setdefault(12, []).append(f"buffer_load_dwordx2 v[{B1+12}:{B1+13}], v{vDUM}, s[52:55], s57 offen ;@BIAS")
    a.at_hook("k1pre16", "WAIT WPH")
    sd = Side()
    for fb in range(2):
        for jj in range(2):
            sd(f"ds_read_b64_tr_b16 v[{WP+fb*4+jj*2}:{WP+fb*4+jj*2+1}], v11 offset:{fb*32+jj*1024} ;@WP")
    early = C.BURST and C.BURST < 12
    vb = 29 if early else 11; vt = 30 if early else vDUM; sb = 76 if early else 52; so_ = 69 if early else 58
    sd2 = Side()
    sd2(f"""
    s_mul_i32 s48, s2, 28672
    s_lshl_b32 s49, s36, 12
    s_add_u32 s48, s48, s49
    s_lshl_b32 s49, s2, 13
    {{
    s_cmp_eq_u32 s36, 7
    s_cselect_b32 s{sb}, s60, s14
    s_cselect_b32 s{sb+1}, s61, s15
    s_mov_b32 s{sb+2}, {3584*2048}
    s_cselect_b32 s{sb+2}, {1024*2048}, s{sb+2}
    s_cselect_b32 s{so_}, s49, s48
    s_cselect_b32 s49, {64//C.BN}, {32//C.BN}
    }}
    s_lshl_b32 s90, s49, 7
    s_mov_b32 s{sb+3}, 0x20000
    v_lshlrev_b32 v{vb}, 7, v{vL}
    v_mov_b32 v{vt}, {OOB}
    v_cmp_gt_u32 vcc, s49, v{vL}
    GAP 1
    v_cndmask_b32 v{vb}, v{vt}, v{vb}, vcc
    """)
    if C.BURST:
        for k in range(C.BN):
            extra.setdefault(C.BURST + k * C.BS, []).insert(0, f"buffer_load_dword v0, v{vb}, s[{sb}:{sb+3}], s{so_} offen\ns_add_u32 s{so_}, s{so_}, s90")
    if C.WB >= 0:
        t = 31
        a(f"""
        s_lshr_b32 s48, s36, 1
        s_mul_i32 s48, s48, {C.WBG//4}
        s_add_u32 s48, s48, {C.PD}
        v_lshrrev_b32 v{t}, 3, v{vL}
        v_add_u32 v{t}, s48, v{t}              ; stage
        v_and_b32 v{t+1}, 7, v{vL}
        v_lshl_add_u32 v{t+2}, v{t}, 5, s47    ; row
        s_and_b32 s48, s36, 1
        s_cmp_eq_u32 s48, 0
        s_cbranch_scc0 L1_pfw1
        v_mul_u32_u24 v28, 6144, v{t+2}
        v_lshrrev_b32 v{t+3}, 1, v{t+1}
        v_lshl_add_u32 v28, v{t+3}, 11, v28
        v_and_b32 v{t+3}, 1, v{t+1}
        v_lshl_add_u32 v28, v{t+3}, 7, v28
        s_lshl_b32 s48, s46, 8
        v_add_u32 v28, s48, v28
        s_mov_b32 s80, s4
        s_mov_b32 s81, s5
        s_mov_b32 s82, {1024*6144}
        s_mov_b32 s48, 6
        s_mov_b32 s85, {C.WBG*32*6144}
        s_branch L1_pfj
        L1_pfw1:
        v_mul_u32_u24 v28, 7168, v{t+2}
        s_mul_i32 s48, s46, 768
        v_lshl_add_u32 v{t+3}, v{t+1}, 7, s48
        s_lshl_b32 s48, s46, 7
        s_add_u32 s48, s48, 6144
        v_mov_b32 v{t+4}, s48
        v_cmp_gt_u32 vcc, 6, v{t+1}
        s_nop 1
        v_cndmask_b32 v{t+3}, v{t+4}, v{t+3}, vcc
        v_add_u32 v28, v28, v{t+3}
        s_mov_b32 s80, s6
        s_mov_b32 s81, s7
        s_mov_b32 s82, {1024*7168}
        s_mov_b32 s48, 7
        s_mov_b32 s85, {C.WBG*32*7168}
        L1_pfj:
        s_mov_b32 s83, 0x20000
        v_mov_b32 v{t+4}, {OOB}
        v_cmp_gt_u32 vcc, s48, v{t+1}
        s_nop 1
        v_cndmask_b32 v28, v{t+4}, v28, vcc
        v_cmp_gt_u32 vcc, {2*C.WBG}, v{vL}
        s_mov_b32 s84, 0
        s_nop 0
        v_cndmask_b32 v28, v{t+4}, v28, vcc
        """)
        ld = "buffer_load_dword v0, v28, s[80:83], s84 offen\ns_add_u32 s84, s84, s85"
        for k in range(-(-(32 - C.PD) // C.WBG)):
            assert C.WB + k * C.WBS < 16
            extra.setdefault(C.WB + k * C.WBS, []).append(ld)
    pf.stamp('issued')
    a("WAIT B0")
    a("s_barrier")
    for nb in range(13): a(k1_reads(nb, 0))
    pf.stamp('first')
    for s in range(NS):
        if C.FINE1 and s in (2, 4, 8, 12, 16, 20, 24, 28): pf.stamp(f'k{s}')
        a.hook(f"k1pre{s}")
        need = [u for u in range(s + 1, min(nextbar(s), NS - 1) + 1)] if s in bars else []
        a(f"WAIT A{s}" + ''.join(f" B{u}" for u in need))
        if s in bars: a("s_barrier")
        lg = []
        for u in planB[s]: lg += k1_loadB(u)
        for u in planA[s]: lg += k1_loadA(u)
        if extra and s in extra: lg += extra[s]
        pos = {}
        for i, g in enumerate(lg): pos.setdefault(1 + (i * 11) // max(len(lg), 6), []).append(g)
        for nb in range(13):
            if nb == 0: a(f"WAIT R{s}_8")
            if nb == 9: a(f"WAIT R{s}_12")
            for mb in range(2):
                ar = AR + (s % 8) * 8 + mb * 4
                c = '0' if s == 0 else f"v[{acc(mb,nb)}:{acc(mb,nb)+3}]"
                a(f"v_mfma_f32_16x16x32_bf16 v[{acc(mb,nb)}:{acc(mb,nb)+3}], v[{BF+nb*4}:{BF+nb*4+3}], v[{ar}:{ar+3}], {c}")
                a.slot(s + (nb * 2 + mb) / 26.0)
            if s + 1 < NS: a(k1_reads(nb, s + 1))
            for g in pos.get(nb, []): a(g)
    a.place(sd, 16, 18)
    if early: a.place(sd2, C.BURST - 3, C.BURST - 1)
    else: a.place(sd2, 18, 19.9)

def packfrag(a, dst, r0, r1):
    a(f"v_cvt_pk_bf16_f32 v{dst}, v{r0}, v{r0+1}")
    a(f"v_cvt_pk_bf16_f32 v{dst+1}, v{r0+2}, v{r0+3}")
    a(f"v_cvt_pk_bf16_f32 v{dst+2}, v{r1}, v{r1+1}")
    a(f"v_cvt_pk_bf16_f32 v{dst+3}, v{r1+2}, v{r1+3}")
def red4(a, op, q):
    A_, B_, C_, D_ = q
    a(f"v_permlane32_swap_b32 v{A_}, v{B_}")
    a(f"v_permlane32_swap_b32 v{C_}, v{D_}")
    a(f"{op} v{A_}, v{A_}, v{B_}")
    a(f"{op} v{C_}, v{C_}, v{D_}")
    a(f"v_permlane16_swap_b32 v{A_}, v{C_}")
    a(f"{op} v{A_}, v{A_}, v{C_}")
    a(f"v_mov_b32 v{C_}, v{A_}")
    a(f"v_permlane16_swap_b32 v{A_}, v{C_}")
    a(f"v_mov_b32 v{B_}, v{A_}")
    a(f"v_mov_b32 v{D_}, v{C_}")
    a(f"v_permlane32_swap_b32 v{A_}, v{B_}")
    a(f"v_permlane32_swap_b32 v{C_}, v{D_}")
def feature_map(a, kf, pk):
    for mb in range(2):
        for fb in range(2):
            r = PK + (mb * 2 + fb) * 4
            a(f"v_mfma_f32_16x16x32_bf16 v[{r}:{r+3}], v[{WP+fb*4}:{WP+fb*4+3}], v[{kf(mb)}:{kf(mb)+3}], 0")
    a("GAP 6")
    for k in range(16): a(f"v_cvt_pk_bf16_f32 v{PK+k}, 0, v{PK+k}")
    for mb in range(2):
        r = PK + mb * 8
        mx, mn = ST + 2 * mb, ST + 2 * mb + 1
        a(f"v_max3_f32 v{mx}, v{r}, v{r+1}, v{r+2}")
        a(f"v_min3_f32 v{mn}, v{r}, v{r+1}, v{r+2}")
        a(f"v_max3_f32 v{mx}, v{mx}, v{r+3}, v{r+4}")
        a(f"v_min3_f32 v{mn}, v{mn}, v{r+3}, v{r+4}")
        a(f"v_max3_f32 v{mx}, v{mx}, v{r+5}, v{r+6}")
        a(f"v_min3_f32 v{mn}, v{mn}, v{r+5}, v{r+6}")
        a(f"v_max_f32 v{mx}, v{mx}, v{r+7}")
        a(f"v_max_f32 v{mn}, -v{mn}, -v{r+7}")
    red4(a, "v_max_f32", [ST, ST + 1, ST + 2, ST + 3])
    for k in range(4): a(f"v_mul_f32 v{ST+k}, s56, v{ST+k}")
    for mb in range(2):
        for sg in range(2):
            e0 = E + (mb * 2 + sg) * 8; p0 = PK + mb * 8
            if pk:
                for k in range(0, 8, 2):
                    a(f"v_pk_fma_f32 v[{e0+k}:{e0+k+1}], v[{p0+k}:{p0+k+1}], s[56:57], v[{ST+2*mb}:{ST+2*mb+1}] op_sel:[0,0,{sg}] op_sel_hi:[1,0,{sg}] neg_lo:[{sg},0,1] neg_hi:[{sg},0,1]")
            else:
                for k in range(8):
                    a(f"v_fma_f32 v{e0+k}, {'-' if sg else ''}v{p0+k}, s56, -v{ST+2*mb+sg}")
            for k in range(8): a(f"v_exp_f32 v{e0+k}, v{e0+k}")
    for q in range(4):
        e = E + q * 8; s_ = ST + 4 + q
        if pk:
            a(f"v_pk_add_f32 v[{TT}:{TT+1}], v[{e}:{e+1}], v[{e+2}:{e+3}]")
            a(f"v_pk_add_f32 v[{TT+2}:{TT+3}], v[{e+4}:{e+5}], v[{e+6}:{e+7}]")
            a(f"v_pk_add_f32 v[{TT}:{TT+1}], v[{TT}:{TT+1}], v[{TT+2}:{TT+3}]")
            a(f"v_add_f32 v{s_}, v{TT}, v{TT+1}")
        else:
            a(f"v_add_f32 v{TT}, v{e}, v{e+2}")
            a(f"v_add_f32 v{TT+1}, v{e+1}, v{e+3}")
            a(f"v_add_f32 v{TT+2}, v{e+4}, v{e+6}")
            a(f"v_add_f32 v{TT+3}, v{e+5}, v{e+7}")
            a(f"v_add_f32 v{TT}, v{TT}, v{TT+2}")
            a(f"v_add_f32 v{TT+1}, v{TT+1}, v{TT+3}")
            a(f"v_add_f32 v{s_}, v{TT}, v{TT+1}")
    red4(a, "v_add_f32", [ST + 4, ST + 5, ST + 6, ST + 7])
    for q in range(4): a(f"v_rcp_f32 v{ST+4+q}, v{ST+4+q}")
    for q in range(4):
        e = E + q * 8
        if pk:
            sp = ST + 4 + (q & ~1); o = q & 1
            for k in range(0, 8, 2):
                a(f"v_pk_mul_f32 v[{e+k}:{e+k+1}], v[{e+k}:{e+k+1}], v[{sp}:{sp+1}] op_sel:[0,{o}] op_sel_hi:[1,{o}]")
        else:
            for k in range(8): a(f"v_mul_f32 v{e+k}, v{ST+4+q}, v{e+k}")
        for k in range(4): a(f"v_cvt_pk_bf16_f32 v{PH+q*4+k}, v{e+2*k}, v{e+2*k+1}")

def post_setup(a):
    t = TT
    a(f"""
    s_mov_b32 s56, {LOG2E}
    s_mov_b32 s57, 0xffff0000
    v_lshrrev_b32 v{t}, 4, v{vL}               ; g
    v_and_b32 v{t+1}, 15, v{vL}                ; m
    s_lshl_b32 s48, s36, 5
    v_add_u32 v{vTW}, s48, v{t+1}
    v_lshlrev_b32 v{vTW}, 8, v{vTW}
    v_and_b32 v{t+2}, 7, v{t+1}
    v_lshl_add_u32 v{vTW}, v{t+2}, 5, v{vTW}
    v_lshrrev_b32 v{t+2}, 2, v{t+1}
    v_xor_b32 v{t+2}, v{t+2}, v{t}
    v_lshl_add_u32 v{vTW}, v{t+2}, 3, v{vTW}
    v_lshrrev_b32 v{t+2}, 2, v{vL}
    v_lshlrev_b32 v{vTR}, 8, v{t+2}
    v_and_b32 v{t+2}, 7, v{t+2}
    v_lshl_add_u32 v{vTR}, v{t+2}, 5, v{vTR}
    v_and_b32 v{t+2}, 3, v{vL}
    v_xor_b32 v{t+2}, v{t+2}, v{t}
    v_lshl_add_u32 v{vTR}, v{t+2}, 3, v{vTR}
    v_mov_b32 v{vONE}, 1
    v_mov_b32 v{vSEL}, {OOB}
    v_cmp_eq_u32 vcc, 0, v{vL}
    v_cndmask_b32 v{vSEL}, v{vSEL}, 0, vcc
    s_mul_i32 s59, s39, 294912
    s_add_u32 s59, s59, {A2_OFF}
    """)

def h_epilogue(a, HP, sc):
    BI = TT
    for i in range(7):
        nb = 6 + i
        a(f"v_lshlrev_b32 v{BI}, 16, v{B1+2*i}")
        a(f"v_and_b32 v{BI+1}, s57, v{B1+2*i}")
        a(f"v_lshlrev_b32 v{BI+2}, 16, v{B1+2*i+1}")
        a(f"v_and_b32 v{BI+3}, s57, v{B1+2*i+1}")
        rs = [(acc(mb, nb) + 2 * hh, BI + 2 * hh, HP + mb * 16 + i * 2 + hh) for mb in range(2) for hh in range(2)]
        for rr, bi, d in rs:
            a(f"v_cvt_pk_bf16_f32 v{rr}, 0, v{rr}")
            a(f"v_cvt_pk_bf16_f32 v{rr+1}, 0, v{rr+1}")
        for rr, bi, d in rs: a(f"v_pk_add_f32 v[{rr}:{rr+1}], v[{rr}:{rr+1}], v[{bi}:{bi+1}]")
        for rr, bi, d in rs: a(f"v_cvt_pk_bf16_f32 v{d}, v{rr}, v{rr+1}")
        for rr, bi, d in rs: a(f"v_pk_max_i16 v{d}, v{d}, 0")
        for rr, bi, d in rs:
            a(f"v_lshlrev_b32 v{rr}, 16, v{d}")
            a(f"v_and_b32 v{rr+1}, s57, v{d}")
        for rr, bi, d in rs: a(f"v_pk_mul_f32 v[{rr}:{rr+1}], v[{rr}:{rr+1}], v[{rr}:{rr+1}]")
        for rr, bi, d in rs: a(f"v_cvt_pk_bf16_f32 v{d}, v{rr}, v{rr+1}")
        if i in (1, 3, 5):
            c = i // 2
            if c == 0:
                a(f"s_mul_i32 s48, s37, {3*2048}")
                a(f"s_add_u32 s48, s48, s59")
                a(f"s_add_u32 s48, s48, {32*2048}")
            if c == 2: a(f"s_add_u32 s48, s48, 4096")
            for mb in range(2):
                r = HP + mb * 16 + c * 4
                a(f"buffer_store_dwordx4 v[{r}:{r+3}], v{vA}, s[28:31], s48 offen offset:{(c&1)*2048+mb*1024}{sc} ;@HS")
    a(f"""
    s_lshr_b32 s48, s37, 1
    s_lshl_b32 s48, s48, 11
    s_add_u32 s48, s48, s59
    s_add_u32 s48, s48, {128*2048}
    s_and_b32 s49, s37, 1
    s_lshl_b32 s49, s49, 3
    s_add_u32 s48, s48, s49
    """)
    for mb in range(2):
        r = HP + mb * 16 + 12
        a(f"buffer_store_dwordx2 v[{r}:{r+1}], v{vA}, s[28:31], s48 offen offset:{mb*1024}{sc} ;@HS")

def t_write(a):
    t = TT
    for Q in range(6):
        a(f"v_xor_b32 v{t+(Q&1)}, {Q<<5}, v{vTW}")
        for mb in range(2):
            src = PH + (mb * 2 + (Q >> 1)) * 4 + (Q & 1) * 2 if Q < 4 else acc(mb, 4) + (Q - 4) * 2
            a(f"ds_write_b64 v{t+(Q&1)}, v[{src}:{src+1}] offset:{mb*4096} ;@TW")
    a(f"""
    s_and_b32 s48, s36, 3
    s_lshl_b32 s48, s48, 5
    v_xor_b32 v{t+2}, s48, v{vTR}
    s_lshr_b32 s48, s36, 2
    s_add_u32 s48, s48, 4
    s_lshl_b32 s48, s48, 5
    v_xor_b32 v{t+3}, s48, v{vTR}        ; v cols Q = 4 + (w>>2)
    v_mov_b32 v{ST}, 0x3f803f80
    v_mov_b32 v{ST+1}, 0x3f803f80
    v_mov_b32 v{ST+2}, 0x3f803f80
    v_mov_b32 v{ST+3}, 0x3f803f80
    """)

def kv_stage(a):
    t = TT
    FA = E; FB_ = 192; KVT = PK; ZT = PK + 4
    def mm(k2):
        a(f"WAIT KR{k2}")
        c = '0' if k2 == 0 else f"v[{KVT}:{KVT+3}]"
        a(f"v_mfma_f32_16x16x32_bf16 v[{KVT}:{KVT+3}], v[{FA+k2*4}:{FA+k2*4+3}], v[{FB_+k2*4}:{FB_+k2*4+3}], {c}")
        c = '0' if k2 == 0 else f"v[{ZT}:{ZT+3}]"
        a(f"v_mfma_f32_16x16x32_bf16 v[{ZT}:{ZT+3}], v[{FA+k2*4}:{FA+k2*4+3}], v[{ST}:{ST+3}], {c}")
    for ks in range(8):
        for jj in range(2):
            a(f"ds_read_b64_tr_b16 v[{FA+ks*4+jj*2}:{FA+ks*4+jj*2+1}], v{t+2} offset:{ks*8192+jj*4096} ;@KR{ks}")
        for jj in range(2):
            a(f"ds_read_b64_tr_b16 v[{FB_+ks*4+jj*2}:{FB_+ks*4+jj*2+1}], v{t+3} offset:{ks*8192+jj*4096} ;@KR{ks}")
        if ks >= 3: mm(ks - 3)
    a(f"""
    s_lshl_b32 s48, s37, 3
    s_add_u32 s48, s48, s38
    s_mul_i32 s48, s48, 12288
    s_add_u32 s48, s48, {KVP_OFF}
    s_and_b32 s49, s40, 0xfff
    s_add_u32 s49, s49, s48
    s_add_u32 s49, s49, 8192               ; z tile (w&3)
    s_add_u32 s48, s48, s40                ; + w*1024
    """)
    for k2 in (5, 6, 7): mm(k2)
    a(f"""
    buffer_store_dwordx4 v[{KVT}:{KVT+3}], v{vA}, s[28:31], s48 offen sc1 ;@KS
    buffer_store_dwordx4 v[{ZT}:{ZT+3}], v{vA}, s[28:31], s49 offen sc1 ;@KS
    s_lshl_b32 s58, s37, 8
    s_lshl_b32 s48, s36, 5
    s_add_u32 s58, s58, s48
    s_add_u32 s58, s58, {FLAG_OFF}
    """)
def kv_flag(a):
    a(f"""{{
    s_lshl_b32 s48, s38, 2
    s_add_u32 s48, s48, s58
    WAIT KS
    buffer_store_dword v{vONE}, v{vSEL}, s[28:31], s48 offen sc1
    }}""")

def poll_issue(a, vf, voff, sbase, tag):
    a(f"buffer_load_dword v{vf}, v{voff}, s[28:31], s{sbase} offen sc1 ;@{tag}")
def poll_check(a, vf, voff, sbase, tag):
    ok = lab('ok'); lp = lab('sp')
    a(f"""{{
    WAIT {tag}
    v_cmp_ne_u32 vcc, 1, v{vf}
    s_mov_b32 s49, 0
    s_nop 0
    s_cmp_eq_u64 vcc, 0
    s_cbranch_scc1 {ok}
    SKIP_BEGIN
    {lp}:
    s_sleep 1
    buffer_load_dword v{vf}, v{voff}, s[28:31], s{sbase} offen sc1
    s_waitcnt vmcnt(0)
    v_cmp_ne_u32 vcc, 1, v{vf}
    s_add_u32 s49, s49, 1
    s_nop 0
    s_cmp_eq_u64 vcc, 0
    s_cbranch_scc1 {ok}
    s_cmp_lt_u32 s49, 0x40000
    s_cbranch_scc1 {lp}
    SKIP_END
    {ok}:
    }}""")

PL = E; ZL = ST
def partial_loads(a):
    a(f"""
    s_mul_i32 s48, s37, {8*12288}
    s_add_u32 s48, s48, {KVP_OFF}
    s_and_b32 s49, s40, 0xfff
    s_add_u32 s49, s49, s48
    s_add_u32 s49, s49, 8192
    s_add_u32 s48, s48, s40
    v_and_b32 v{TT}, 7, v{vL}
    v_mul_u32_u24 v{TT}, 12288, v{TT}
    v_lshrrev_b32 v{TT+1}, 4, v{vL}
    v_lshl_add_u32 v{TT}, v{TT+1}, 8, v{TT}
    buffer_load_dwordx4 v[{ZL}:{ZL+3}], v{TT}, s[28:31], s49 offen sc1 ;@PZ
    """)
    for mt in range(8):
        a(f"""{{
        buffer_load_dwordx4 v[{PL+mt*4}:{PL+mt*4+3}], v{vA}, s[28:31], s48 offen sc1 ;@PP{mt}
        s_add_u32 s48, s48, 12288
        }}""")
def partial_reduce(a, KVF, pk):
    a(f"""
    s_lshr_b32 s49, s36, 1
    s_lshl_b32 s49, s49, 10
    s_and_b32 s50, s36, 1
    s_lshl_b32 s50, s50, 3
    s_add_u32 s49, s49, s50
    s_add_u32 s49, s49, {KVF}
    v_add_u32 v{TT}, s49, v{vA}
    s_and_b32 s49, s49, {~2048 & 0xffffffff}
    v_add_u32 v{TT+1}, s49, v{vA}
    WAIT PZ
    """)
    assert KVF % 4096 == 0
    for r in (4, 2, 1):
        for k in range(4): a(f"v_add_f32 v{ZL+k}, v{ZL+k}, v{ZL+k} row_ror:{r}")
    a(f"v_cvt_pk_bf16_f32 v{ZL}, v{ZL}, v{ZL+1}")
    a(f"v_cvt_pk_bf16_f32 v{ZL+1}, v{ZL+2}, v{ZL+3}")
    a(f"ds_write_b64 v{TT+1}, v[{ZL}:{ZL+1}] offset:4096 ;@KW")
    P = PL
    for mt in range(1, 8):
        a(f"WAIT PP{mt}")
        if pk:
            a(f"v_pk_add_f32 v[{P}:{P+1}], v[{P}:{P+1}], v[{P+mt*4}:{P+mt*4+1}]")
            a(f"v_pk_add_f32 v[{P+2}:{P+3}], v[{P+2}:{P+3}], v[{P+mt*4+2}:{P+mt*4+3}]")
        else:
            for k in range(4): a(f"v_add_f32 v{P+k}, v{P+k}, v{P+mt*4+k}")
    a(f"v_cvt_pk_bf16_f32 v{P}, v{P}, v{P+1}")
    a(f"v_cvt_pk_bf16_f32 v{P+1}, v{P+2}, v{P+3}")
    a(f"ds_write_b64 v{TT}, v[{P}:{P+1}] ;@KW")
def o_stage(a, KVF, sc):
    KV = E
    O = [28, 92]
    TP = 40
    a(f"v_add_u32 v{TT}, {KVF}, v{vA}")
    for t in range(6):
        a(f"ds_read_b128 v[{KV+t*4}:{KV+t*4+3}], v{TT} offset:{t*1024} ;@KV")
    a("GAP 4")
    a("WAIT KV")
    for mb in range(2):
        for db in range(3):
            r = O[mb] + db * 4
            a(f"v_mfma_f32_16x16x32_bf16 v[{r}:{r+3}], v[{KV+db*8}:{KV+db*8+3}], v[{PH+mb*8}:{PH+mb*8+3}], 0")
    for mb in range(2):
        for db in range(3):
            r = O[mb] + db * 4
            a(f"v_mfma_f32_16x16x32_bf16 v[{r}:{r+3}], v[{KV+db*8+4}:{KV+db*8+7}], v[{PH+mb*8+4}:{PH+mb*8+7}], v[{r}:{r+3}]")
    a(f"s_lshl_b32 s50, s37, 11")
    a(f"s_add_u32 s50, s50, s59")
    a("GAP 4")
    for mb in range(2):
        dn = O[mb] + 8
        a(f"v_cvt_pk_bf16_f32 v{dn}, 0, v{dn}")
        a(f"v_add_f32 v{dn}, 0x358637bd, v{dn}")
        a(f"v_cvt_pk_bf16_f32 v{dn}, 0, v{dn}")
        a(f"v_rcp_f32 v{dn}, v{dn}")
        r = O[mb]
        for k in range(8): a(f"v_cvt_pk_bf16_f32 v{r+k}, 0, v{r+k}")
        for k in range(8): a(f"v_mul_f32 v{r+k}, v{dn}, v{r+k}")
        t = TP + mb * 4
        for k in range(4): a(f"v_cvt_pk_bf16_f32 v{t+k}, v{r+2*k}, v{r+2*k+1}")
        a(f"buffer_store_dwordx4 v[{t}:{t+3}], v{vA}, s[28:31], s50 offen offset:{mb*1024}{sc} ;@OS")

def gen_k1():
    a = S()
    pf = Prof(a, vPROF, 1)
    a("""
    s_cmp_ge_u32 s2, 256
    s_cbranch_scc1 L1_end
    """)
    pf.stamp('start')
    k1_setup(a, pf)
    pf.stamp('setup')
    k1_loop(a, pf)
    pf.stamp('loop')
    post_setup(a)
    for mb in range(2): packfrag(a, acc(mb, 2), acc(mb, 2), acc(mb, 3))
    for mb in range(2): packfrag(a, KFQ + mb * 4, acc(mb, 0), acc(mb, 1))
    for mb in range(2): packfrag(a, acc(mb, 4), acc(mb, 4), acc(mb, 5))
    a("WAIT BIAS")
    h_epilogue(a, 112, C.SC)
    pf.stamp('hepi')
    a("WAIT WP")
    feature_map(a, lambda mb: acc(mb, 2), True)
    pf.stamp('fmk')
    a("WAIT B31")
    a("s_barrier")
    t_write(a)
    a("WAIT TW")
    a("s_barrier")
    kv_stage(a)
    kv_flag(a)
    pf.stamp('kv')
    a(f"v_and_b32 v9, 7, v{vL}")
    a(f"v_lshlrev_b32 v9, 2, v9")
    feature_map(a, lambda mb: KFQ + mb * 4, True)
    poll_issue(a, 10, 9, 58, 'KF')
    pf.stamp('fmq')
    poll_check(a, 10, 9, 58, 'KF')
    pf.stamp('poll')
    partial_loads(a)
    partial_reduce(a, 65536, True)
    a("WAIT KW")
    a("s_barrier")
    pf.stamp('reduce')
    o_stage(a, 65536, C.SC)
    if C.PROF:
        pf.stamp('o')
        a("s_waitcnt vmcnt(0)")
        pf.stamp('end')
        pf.flush(28, 12, 36, 8)
    a("L1_end:")
    a("s_endpgm")
    return a, 256, 100, LDS_MAIN
C.SC = ''


ACC2, BF2, AR2, ACCA = 192, 160, 112, 36
acc2 = lambda mb, nb: ACC2 + (mb * 8 + nb) * 4
acca = lambda mb, nb: ACCA + (mb * 4 + nb) * 4
XR, B2R, XT = 68, 76, 84
vT, vTO = 14, 22
vA0, vA1 = 26, 27
vBh0, vBh1, vBo, vO, vX1, vPO = 3, 4, 9, 10, 11, 12
D2 = 6; NH = 28; NS2 = 44
RING2 = 65536

def k2_setup(a, t):
    a(f"""
    s_lshr_b32 s70, s36, 2            ; g
    s_and_b32 s71, s36, 3             ; mw
    s_and_b32 s74, s46, 1             ; kh
    s_lshr_b32 s48, s46, 1            ; xq
    s_and_b32 s72, s48, 1
    s_lshl_b32 s72, s72, 3
    s_and_b32 s49, s47, 7
    s_add_u32 s72, s72, s49           ; mt
    s_lshr_b32 s73, s48, 1
    s_lshl_b32 s73, s73, 2
    s_lshr_b32 s49, s47, 3
    s_add_u32 s73, s73, s49           ; nt2
    s_lshl_b32 s75, s74, 1
    s_add_u32 s75, s75, s70           ; q = 2kh+g
    v_lshrrev_b32 v{t}, 4, v{vL}
    s_lshl_b32 s48, s71, 3
    v_add_u32 v{t+1}, s48, v{t}
    v_lshlrev_b32 v{vBh0}, 11, v{t+1}
    v_lshlrev_b32 v{t}, 1, v{t}
    v_and_b32 v{t+1}, 15, v{vL}
    v_xor_b32 v{t}, v{t}, v{t+1}
    v_lshl_add_u32 v{vBh0}, v{t}, 4, v{vBh0}
    s_lshl_b32 s48, s73, 8
    v_add_u32 v{vBh0}, s48, v{vBh0}
    v_xor_b32 v{vBh1}, 128, v{vBh0}
    v_add_u32 v{vBh1}, 8192, v{vBh1}
    s_mov_b32 s80, s14
    s_mov_b32 s81, s15
    s_mov_b32 s82, {3584*2048}
    s_mov_b32 s83, 0x20000
    s_mul_i32 s85, s75, {(24 if C.KMAP else 28)*65536}
    s_sub_u32 s85, s85, 65536          ; pre-increment
    s_mul_i32 s87, s70, {D2*8192}
    s_add_u32 s87, s87, {RING2}
    s_lshl_b32 s86, s71, 11
    s_add_u32 s86, s86, s87
    """)
def k2_setup2(a, t):
    a(f"""
    ; A addresses
    s_lshl_b32 s48, s70, 10
    v_xor_b32 v{vA0}, s48, v{vA}
    v_xor_b32 v{vA1}, 0x400, v{vA0}
    s_lshl_b32 s88, s72, 2
    s_add_u32 s88, s88, s71
    s_mul_i32 s48, s88, 294912
    {{
    s_add_u32 s48, s48, {A2_OFF}
    s_add_u32 s76, s8, s48
    s_addc_u32 s77, s9, 0
    }}
    s_mov_b32 s78, 294912
    s_mov_b32 s79, 0x20000
    s_mul_i32 s84, s75, {(24 if C.KMAP else 28)*2048}
    s_add_u32 s84, s84, {32*2048}
    v_lshrrev_b32 v{t}, 2, v{vL}
    v_and_b32 v{t+1}, 3, v{vL}
    v_lshlrev_b32 v{t+1}, 3, v{t+1}
    v_add_u32 v{t+1}, s87, v{t+1}
    v_lshl_add_u32 v{t+2}, v{t}, 8, v{t+1}
    v_and_b32 v{t+3}, 7, v{t}
    v_lshlrev_b32 v{t+3}, 5, v{t+3}
    s_lshl_b32 s48, s74, 7
    v_xor_b32 v{t+3}, s48, v{t+3}
    """)
    for nb in range(8):
        a(f"v_xor_b32 v{vT+nb}, {nb*32}, v{t+3}")
        a(f"v_add_u32 v{vT+nb}, v{vT+nb}, v{t+2}")
    a(f"""
    v_lshl_add_u32 v{t+2}, v{t}, 7, v{t+1}
    v_bfe_u32 v{t+3}, v{vL}, 3, 2
    v_lshlrev_b32 v{t+3}, 5, v{t+3}
    """)
    for nb in range(4):
        a(f"v_xor_b32 v{vTO+nb}, {nb*32}, v{t+3}")
        a(f"v_add_u32 v{vTO+nb}, v{vTO+nb}, v{t+2}")
    a(f"""
    v_lshrrev_b32 v{t}, 3, v{vL}
    s_lshl_b32 s48, s71, 3
    v_add_u32 v{t}, s48, v{t}
    v_lshlrev_b32 v{vBo}, 11, v{t}
    v_bfe_u32 v{t}, v{vL}, 4, 2
    v_lshlrev_b32 v{t}, 1, v{t}
    v_and_b32 v{t+1}, 7, v{vL}
    v_xor_b32 v{t}, v{t}, v{t+1}
    v_lshl_add_u32 v{vBo}, v{t}, 4, v{vBo}
    s_lshl_b32 s89, s73, 8
    s_lshl_b32 s48, s74, 7
    s_add_u32 s89, s89, s48
    v_add_u32 v{vBo}, s89, v{vBo}
    v_and_b32 v{vPO}, {15 if C.KMAP else 31}, v{vL}
    v_lshlrev_b32 v{vPO}, 2, v{vPO}
    """)

def k2_loadB(u):
    sl = u % D2
    if u < NH:
        pre = f"""s_lshl_b32 s85, s75, 18
        s_add_u32 s85, s85, {95*65536}""" if (u == 24 and C.KMAP) else ""
        return [f"""{{
        {pre}
        s_add_u32 m0, s86, {sl*8192}
        s_add_u32 s85, s85, 65536
        buffer_load_dwordx4 v{vBh0}, s[80:83], s85 offen lds ;@b{u}
        }}""", f"""{{
        s_add_u32 m0, s86, {sl*8192+1024}
        s_nop 0
        buffer_load_dwordx4 v{vBh1}, s[80:83], s85 offen lds ;@b{u}
        }}"""]
    pre = ""
    if u == NH:
        pre = f"""s_mov_b32 s80, s60
        s_mov_b32 s81, s61
        s_mov_b32 s82, {1024*2048}
        s_lshl_b32 s85, s70, 20
        s_sub_u32 s85, s85, 65536
        s_lshl_b32 s86, s71, 10
        s_add_u32 s86, s86, s87"""
    return [f"""{{
        {pre}
        s_add_u32 m0, s86, {sl*8192}
        s_add_u32 s85, s85, 65536
        buffer_load_dwordx4 v{vBo}, s[80:83], s85 offen lds ;@b{u}
        }}"""]
def k2_loadA(u, sc):
    sl = u % D2; o = (u & 1) * 2048
    if sc and C.KMAP and not C.ASC and not 24 <= u < NH: sc = ''
    g0 = f"buffer_load_dwordx4 v[{AR2+sl*8}:{AR2+sl*8+3}], v{vA0}, s[76:79], s84 offen offset:{o}{sc} ;@a{u}"
    g1 = f"buffer_load_dwordx4 v[{AR2+sl*8+4}:{AR2+sl*8+7}], v{vA1}, s[76:79], s84 offen offset:{o}{sc} ;@a{u}"
    if u == NH: g0 = "s_lshl_b32 s84, s70, 15\n" + g0
    if u == 24 and C.KMAP: g0 = f"s_lshl_b32 s84, s75, 13\ns_add_u32 s84, s84, {128*2048}\n" + g0
    if u & 1: g1 += "\ns_add_u32 s84, s84, 4096"
    return [g0, g1]
def k2_reads(nb, u):
    sl = u % D2
    if u < NH: reg = vT + nb; o1 = 4096
    else: reg = vTO + nb; o1 = 2048
    return f"""ds_read_b64_tr_b16 v[{BF2+nb*4}:{BF2+nb*4+1}], v{reg} offset:{sl*8192} ;@r{u}_{nb}
    ds_read_b64_tr_b16 v[{BF2+nb*4+2}:{BF2+nb*4+3}], v{reg} offset:{sl*8192+o1} ;@r{u}_{nb}"""

def k2_loop(a, pf, nBpre, nApre, sc, K0=100):
    nb_, na_ = nBpre, nApre
    a("WAIT b0")
    a("s_barrier")
    for nb in range(8): a(k2_reads(nb, 0))
    pf.stamp('first2')
    for s in range(NS2):
        if s == NH: pf.stamp('phaseH')
        if C.FINE == 1 and s > NH: pf.stamp(f's{s-1}')
        if C.FINE == 1 and s in (4, 8, 16, 24): pf.stamp(f'h{s}')
        if C.FINE == 2 and (s in (32, 36, 40) or (0 < s < NH and s % 2 == 0)): pf.stamp(f'h{s}')
        a.hook(f"k2pre{s}")
        a(f"WAIT a{s}" + (f" b{s+1}" if s + 1 < NS2 else ""))
        a("s_barrier")
        a.hook(f"k2post{s}")
        lg = []; k = 0
        while nb_ < NS2 and nb_ <= s + D2 - 1 and k < 2: lg += k2_loadB(nb_); nb_ += 1; k += 1
        k = 0
        while na_ < NS2 and na_ <= s + D2 - 1 and k < 2: lg += k2_loadA(na_, sc); na_ += 1; k += 1
        NB = 8 if s < NH else 4
        NBn = 8 if s + 1 < NH else 4
        pos = {}
        for i, g in enumerate(lg): pos.setdefault((i * NB) // max(len(lg), NB // 2 + 1), []).append(g)
        for nb in range(NB):
            if NB == 8:
                if nb == 0: a(f"WAIT r{s}_3")
                if nb == 4: a(f"WAIT r{s}_7")
            else:
                if nb % 2 == 0: a(f"WAIT r{s}_{nb+1}")
            for mb in range(2):
                ar = AR2 + (s % D2) * 8 + mb * 4
                r = acc2(mb, nb) if s < NH else acca(mb, nb)
                c = '0' if s in (0, NH) else f"v[{r}:{r+3}]"
                a(f"v_mfma_f32_16x16x32_bf16 v[{r}:{r+3}], v[{BF2+nb*4}:{BF2+nb*4+3}], v[{ar}:{ar+3}], {c}")
                a.slot(K0 + s + (nb * 2 + mb) / (2.0 * NB))
            if s + 1 < NS2 and nb < NBn: a(k2_reads(nb, s + 1))
            for g in pos.get(nb, []): a(g)

def k2_xload(a, t):
    a(srd(32, 's62', 's63', 4 << 20))
    a(srd(52, 's64', 's65', 2048))
    a(f"""
    s_lshl_b32 s48, s88, 5
    s_lshl_b32 s49, s70, 4
    s_add_u32 s48, s48, s49
    v_and_b32 v{t}, 15, v{vL}
    v_add_u32 v{t}, s48, v{t}
    v_lshlrev_b32 v{t}, 11, v{t}
    v_add_u32 v{t}, s89, v{t}
    v_lshrrev_b32 v{t+1}, 4, v{vL}
    v_lshl_add_u32 v{vO}, v{t+1}, 4, v{t}
    v_lshl_add_u32 v{t}, v{t+1}, 3, v{t}
    v_lshlrev_b32 v{t+1}, 3, v{t+1}
    """)
    for nb in range(4):
        a(f"buffer_load_dwordx2 v[{XR+2*nb}:{XR+2*nb+1}], v{t}, s[32:35], 0 offen offset:{32*nb} ;@XL")
        a(f"buffer_load_dwordx2 v[{B2R+2*nb}:{B2R+2*nb+1}], v{t+1}, s[52:55], s89 offen offset:{32*nb} ;@XL")
    a(srd(32, 's66', 's67', 4 << 20))

def k2_exchange(a, K0=100):
    s0 = K0 + NH
    P = acc2(1, 0)
    sd = Side()
    sd(f"""
    s_lshl_b32 s48, s71, 14
    s_lshl_b32 s49, s70, 13
    s_add_u32 s48, s48, s49
    v_add_u32 v{vX1}, s48, v{vA}
    v_xor_b32 v{XT}, 0x2000, v{vX1}
    s_lshl_b32 s48, s72, 3
    s_add_u32 s48, s48, s73
    s_lshl_b32 s48, s48, 1                   ; tile*2
    s_add_u32 s49, s48, s74
    s_xor_b32 s48, s49, 1
    s_lshl_b32 s48, s48, 3
    s_add_u32 s48, s48, s36
    s_lshl_b32 s49, s49, 3
    s_add_u32 s49, s49, s36
    s_lshl_b32 s90, s48, 12
    s_add_u32 s90, s90, {XCH_OFF}
    s_lshl_b32 s91, s49, 12
    s_add_u32 s91, s91, {XCH_OFF}
    s_lshl_b32 s92, s48, 2
    s_add_u32 s92, s92, {XF_OFF}
    s_lshl_b32 s93, s49, 2
    s_add_u32 s93, s93, {XF_OFF}
    v_mov_b32 v{XT+2}, 0
    """)
    a.place(sd, s0 - 3, s0 - 1)
    def l1w(nbs, k0, k1, tag):
        sd = Side()
        for nb in nbs: sd(f"ds_write_b128 v{XT}, v[{acc2(1,nb)}:{acc2(1,nb)+3}] offset:{nb*1024} ;@{tag}")
        a.place(sd, k0, k1)
    def l1r(nbs, k0, k1, store):
        sd = Side()
        for nb in nbs: sd(f"ds_read_b128 v[{P+nb*4}:{P+nb*4+3}], v{vX1} offset:{nb*1024} ;@XRD{nb}")
        sd("GAP 4")
        for nb in nbs:
            sd(f"WAIT XRD{nb}")
            for k in range(4): sd(f"v_add_f32 v{acc2(0,nb)+k}, v{acc2(0,nb)+k}, v{P+nb*4+k}")
            if store:
                sd(f"buffer_store_dwordx4 v[{acc2(0,nb)}:{acc2(0,nb)+3}], v{vA}, s[28:31], s90 offen offset:{(nb-4)*1024} sc1 ;@XS")
        a.place(sd, k0, k1)
    l1w([4, 5, 6, 7], s0 + 0.2, s0 + 0.8, 'XW1')
    a.at_hook(f"k2pre{NH+1}", "WAIT XW1")
    l1r([4, 5, 6, 7], s0 + 1, s0 + 2, True)
    l1w([0, 1, 2, 3], s0 + 2, s0 + 4, 'XW2')
    a.at_hook(f"k2pre{NH+5}", "WAIT XW2")
    l1r([0, 1, 2, 3], s0 + 5, s0 + 7, False)
    sd = Side()
    sd(f"""{{
    WAIT XS
    buffer_store_dword v{vONE}, v{vSEL}, s[28:31], s92 offen sc1
    }}
    """)
    a.place(sd, s0 + C.XF, s0 + C.XF + 0.5)
    sd = Side(); poll_issue(sd, XT + 1, XT + 2, 93, 'XP'); a.place(sd, s0 + C.XP, s0 + C.XP + 0.5)
    sd = Side(); poll_check(sd, XT + 1, XT + 2, 93, 'XP')
    for nb in range(4):
        sd(f"buffer_load_dwordx4 v[{P+16+nb*4}:{P+16+nb*4+3}], v{vA}, s[28:31], s91 offen offset:{nb*1024} sc1 ;@XG")
    a.place(sd, s0 + C.XC, s0 + C.XC + 0.1)

def k2_final(a, pf):
    t = XT
    P = acc2(1, 0)
    for nb in range(4):
        a(f"ds_write_b128 v{t}, v[{acca(1,nb)}:{acca(1,nb)+3}] offset:{nb*1024} ;@FW")
    a("WAIT XG XL")
    for nb in range(4):
        r = acc2(0, nb)
        for h in range(2): a(f"v_pk_add_f32 v[{r+2*h}:{r+2*h+1}], v[{r+2*h}:{r+2*h+1}], v[{P+16+nb*4+2*h}:{P+16+nb*4+2*h+1}]")
    a("WAIT FW")
    a("s_barrier")
    Q = acca(1, 0)
    for nb in range(4):
        a(f"ds_read_b128 v[{Q+nb*4}:{Q+nb*4+3}], v{vX1} offset:{nb*1024} ;@FR{nb}")
    def unpack(dst, src):
        a(f"v_lshlrev_b32 v{dst}, 16, v{src}")
        a(f"v_and_b32 v{dst+1}, s57, v{src}")
        a(f"v_lshlrev_b32 v{dst+2}, 16, v{src+1}")
        a(f"v_and_b32 v{dst+3}, s57, v{src+1}")
    def add4(dst, x, y):
        a(f"v_pk_add_f32 v[{dst}:{dst+1}], v[{x}:{x+1}], v[{y}:{y+1}]")
        a(f"v_pk_add_f32 v[{dst+2}:{dst+3}], v[{x+2}:{x+3}], v[{y+2}:{y+3}]")
    def rnd(r):
        for k in range(4): a(f"v_cvt_pk_bf16_f32 v{r+k}, 0, v{r+k}")
    for nb in range(4):
        r = acc2(0, nb); u = P + nb * 4
        rnd(r); unpack(u, B2R + 2 * nb); add4(r, r, u); rnd(r)
        unpack(u, XR + 2 * nb)
    R = BF2
    for nb in range(4):
        r = acca(0, nb); u = P + nb * 4
        a(f"WAIT FR{nb}")
        add4(r, r, Q + nb * 4); rnd(r); add4(r, r, u); rnd(r); add4(r, r, acc2(0, nb))
        a(f"v_cvt_pk_bf16_f32 v{R+2*nb}, v{r}, v{r+1}")
        a(f"v_cvt_pk_bf16_f32 v{R+2*nb+1}, v{r+2}, v{r+3}")
        if nb & 1:
            p = nb // 2; r = R + 4 * p
            a(f"v_permlane32_swap_b32 v{r}, v{r+2}")
            a(f"v_permlane32_swap_b32 v{r+1}, v{r+3}")
            a(f"v_permlane16_swap_b32 v{r}, v{r+2}")
            a(f"v_permlane16_swap_b32 v{r+1}, v{r+3}")
            a(f"buffer_store_dwordx4 v[{r}:{r+3}], v{vO}, s[32:35], 0 offen offset:{64*p}")

def gen_k2():
    a = S()
    pf = Prof(a, vPROF, 2)
    a("""
    s_cmp_ge_u32 s2, 256
    s_cbranch_scc1 L2_end
    """)
    pf.stamp('start')
    a(f"""
    s_load_dwordx2 s[8:9], s[0:1], 88      ; ws
    s_load_dwordx2 s[14:15], s[0:1], 56    ; w2
    s_load_dwordx2 s[60:61], s[0:1], 24    ; wo
    s_load_dwordx2 s[62:63], s[0:1], 0     ; x
    s_load_dwordx2 s[64:65], s[0:1], 64    ; b2
    s_load_dwordx2 s[66:67], s[0:1], 72    ; out
    v_lshrrev_b32 v36, 6, v0
    v_and_b32 v{vL}, 63, v0
    v_readfirstlane_b32 s36, v36           ; wave
    s_and_b32 s46, s2, 7                   ; x
    s_lshr_b32 s47, s2, 3                  ; j
    v_lshlrev_b32 v{vA}, 4, v{vL}
    s_mov_b32 s57, 0xffff0000
    v_mov_b32 v{vONE}, 1
    v_mov_b32 v{vSEL}, {OOB}
    v_cmp_eq_u32 vcc, 0, v{vL}
    v_cndmask_b32 v{vSEL}, v{vSEL}, 0, vcc
    s_waitcnt lgkmcnt(0)
    """)
    a(srd(28, 's8', 's9', WS_RANGE))
    k2_setup(a, 36); k2_setup2(a, 36)
    pf.stamp('setup')
    for u in range(3):
        for g in k2_loadB(u) + k2_loadA(u, ''): a(g)
    pf.stamp('issued')
    k2_loop(a, pf, 3, 3, '')
    sd = Side(); k2_xload(sd, XT + 4); a.place(sd, 100 + 14, 100 + 17)
    k2_exchange(a)
    pf.stamp('phaseO')
    k2_final(a, pf)
    if C.PROF:
        pf.stamp('final')
        a("s_waitcnt vmcnt(0)")
        pf.stamp('end')
        pf.flush(28, 12, 36, 8)
    a("L2_end:")
    a("s_endpgm")
    return a, 256, 100, LDS_MAIN
C.XF = 6; C.XP = 9; C.XC = 11
C.OLDK2 = 0
C.FINE = 0
C.FINE1 = 0
C.REP = 0


def gen_fused():
    a = S()
    pf = Prof(a, vPROF, 1)
    a("""
    s_cmp_ge_u32 s2, 256
    s_cbranch_scc1 L1_end
    """)
    pf.stamp('start')
    k1_setup(a, pf)
    pf.stamp('setup')
    NPB = 5
    extra = {}
    for u in range(NPB):
        for i, g in enumerate(k2_loadB(u)): extra.setdefault(28 + (2 * u + i) * 4 // (2 * NPB), []).append(g)
    k1_loop(a, pf, extra)
    sd = Side(); k2_setup(sd, 11); a.place(sd, 26.5, 28)
    pf.stamp('loop')
    post_setup(a)
    a("WAIT BIAS")
    h_epilogue(a, 112, ' sc1')
    for mb in range(2): packfrag(a, acc(mb, 2), acc(mb, 2), acc(mb, 3))
    for mb in range(2): packfrag(a, KFQ + mb * 4, acc(mb, 0), acc(mb, 1))
    for mb in range(2): packfrag(a, acc(mb, 4), acc(mb, 4), acc(mb, 5))
    pf.stamp('hepi')
    a("WAIT WP")
    sd = Side(); feature_map(sd, lambda mb: acc(mb, 2), True)
    cut = int(len(sd.at) * C.HFPOS / 100)
    fl = atoms(f"""
    s_lshl_b32 s48, s39, 7
    s_lshl_b32 s49, s37, 2
    s_add_u32 s48, s48, s49
    s_add_u32 s94, s48, {OF_OFF}
    s_add_u32 s48, s48, {HF_OFF}
    WAIT HS
    buffer_store_dword v{vONE}, v{vSEL}, s[28:31], s48 offen sc1
    """)
    sd.at[cut:cut] = fl
    a.emit(sd)
    pf.stamp('fmk')
    a("s_barrier")
    t_write(a)
    k2_setup2(a, E)
    a(f"""
    s_lshl_b32 s95, s88, 7
    s_add_u32 s95, s95, {HF_OFF}
    """)
    vHP = vPO
    if C.KMAP:
        vHP = TT
        a(f"""
        s_lshl_b32 s48, s75, 5
        v_and_b32 v{TT}, 28, v{vPO}
        v_add_u32 v{TT}, s48, v{TT}
        s_lshl_b32 s48, s70, 6
        v_add_u32 v{vPO}, s48, v{vPO}
        """)
    a("WAIT TW")
    a("s_barrier")
    poll_issue(a, 10, vHP, 95, 'HF')
    kv_stage(a)
    pf.stamp('kv')
    poll_check(a, 10, vHP, 95, 'HF')
    pf.stamp('hpoll')
    NPA = C.NPA
    for u in range(NPA):
        for g in k2_loadA(u, ' sc1'): a(g)
    a(f"s_add_u32 s95, s95, {OF_OFF - HF_OFF}")
    a(f"v_and_b32 v7, 7, v{vL}")
    a(f"v_lshlrev_b32 v7, 2, v7")
    sd = Side(); feature_map(sd, lambda mb: KFQ + mb * 4, not C.FMQIN)
    if not C.FMQIN:
        cut = len(sd.at) // 2
        s2_ = Side(); kv_flag(s2_); sd.at[cut:cut] = s2_.at
        a.emit(sd)
    else:
        kv_flag(a)
    pf.stamp('fmq')
    k2_loop(a, pf, NPB, NPA, ' sc1')
    K0 = 100; t0 = K0
    if C.FMQIN:
        a.place(sd, K0, K0 + C.FMQIN); t0 = K0 + C.FMQIN - 2
    sd = Side(); poll_issue(sd, 8, 7, 58, 'KF'); a.place(sd, t0 + 0, t0 + 0.5)
    sd = Side(); poll_check(sd, 8, 7, 58, 'KF'); a.place(sd, t0 + 2, t0 + 2.1)
    sd = Side(); partial_loads(sd); a.place(sd, t0 + 2.1, t0 + 3)
    sd = Side(); partial_reduce(sd, 0, False); a.place(sd, t0 + 5, t0 + 7)
    a.at_hook(f"k2pre{t0-K0+7}", "WAIT KW")
    sd = Side(); o_stage(sd, 0, ' sc1'); a.place(sd, t0 + 7, t0 + 10)
    sd = Side()
    sd(f"""{{
    WAIT OS
    buffer_store_dword v{vONE}, v{vSEL}, s[28:31], s94 offen sc1
    }}""")
    a.place(sd, t0 + 13, t0 + 13.5)
    sd = Side(); k2_xload(sd, XT + 4); a.place(sd, t0 + 11, t0 + 13)
    so = NH - D2 + 1
    sd = Side(); poll_issue(sd, 8, vPO, 95, 'OF'); a.place(sd, K0 + so - 3, K0 + so - 2.5)
    sd = Side(); poll_check(sd, 8, vPO, 95, 'OF'); a.place(sd, K0 + so - 0.2, K0 + so)
    assert t0 + 13.5 < K0 + so - 3
    k2_exchange(a)
    pf.stamp('phaseO')
    k2_final(a, pf)
    if C.PROF:
        pf.stamp('final')
        a("s_waitcnt vmcnt(0)")
        pf.stamp('end')
        pf.flush(28, 12, 36, 8)
    a("L1_end:")
    a("s_endpgm")
    return a, 256, 100, LDS_MAIN
C.FUSED = 1; C.HFPOS = 70; C.NPA = 4; C.FMQIN = 0

HEADER = """; parallel_sum( hedgehog linear attention , squared-relu MLP ) on layernorm(x), + residual
; generated by work2/gen2.py (own generator)."""

def build(path):
    sys.path.insert(0, 'work')
    import gen as old
    ks = []
    k0, v0, s0 = gen_k0(); ks.append(("ln_kernel", finish(k0)[0], v0, s0, 256, 0))
    if C.FUSED:
        k1, v1, s1, l1 = gen_fused(); b, rep = finish(k1); ks.append(("g1_kernel", b, v1, s1, 512, l1))
        if C.REP: print('\n'.join(rep))
    else:
        k1, v1, s1, l1 = gen_k1(); b, rep = finish(k1); ks.append(("g1_kernel", b, v1, s1, 512, l1))
        if C.OLDK2:
            k2, v2, s2, l2 = old.gen_k2(8)
            k2 = [b.replace(' NEG', ' neg_lo:[0,1] neg_hi:[0,1]') for b in fix_hazards(k2)]
        else:
            k2, v2, s2, l2 = gen_k2(); k2 = finish(k2)[0]
        ks.append(("g2_kernel", k2, v2, s2, 512, l2))
    t = [HEADER]
    for n, b, v, s, thr, l in ks: t.append(f"; @launch kernel={n} grid=(256,1,1) block=({thr},1,1) lds={l}")
    t += ['.amdgcn_target "amdgcn-amd-amdhsa--gfx950"', '.text']
    for n, b, v, s, thr, l in ks: t += kernel_text(n, b, 0, 0)
    t += ['.section .rodata,"a"']
    for n, b, v, s, thr, l in ks: t += kd_text(n, v, s)
    open(path, 'w').write('\n'.join(t) + '\n')
    if C.PROF:
        import json; json.dump(PROFNAMES, open(path + '.prof.json', 'w'))

if __name__ == "__main__":
    out = None
    for x in sys.argv[1:]:
        if x.startswith("--"):
            k, _, v = x[2:].partition("=")
            if k == 'SC': v = ' ' + v if v else ''
            elif v == '': v = True
            else: v = int(v)
            setattr(C, k, v)
        else: out = x
    build(out)
```

```python
import sys
from fw import *

XN_OFF = 0
A2_OFF = 4 << 20
KVP_OFF = 24 << 20
FLAG_OFF = 28 << 20
HF_OFF = FLAG_OFF + 8192
OF_OFF = FLAG_OFF + 16384
XF_OFF = FLAG_OFF + 24576
FLAG_BYTES = 32768
XCH_OFF = 32 << 20
WS_RANGE = 48 << 20
PROF_OFF = 44 << 20
LOG2E = 0x3fb8aa3b
OOB = 0x7f000000

class Cfg:
    PROF = False
    U0 = 40
    USW = 99
    BURST = 26
    WB = 3
    WBG = 4
    WBS = 3
    BN = 1
    BS = 2
    KMAP = 1
    ASC = 1
    W2PF = 1
    PD = 12
    BAR2 = True
C = Cfg()

class Prof:
    def __init__(self, a, vreg, kidx, st=96):
        self.a = a; self.v = vreg; self.n = 0; self.k = kidx; self.st = st; self.names = []
    def stamp(self, name=''):
        if not C.PROF: return
        st = self.st
        self.a(f"""s_waitcnt lgkmcnt(0)
        s_memtime s[{st}:{st+1}]
        s_memrealtime s[{st+2}:{st+3}]
        s_waitcnt lgkmcnt(0)
        v_writelane_b32 v{self.v}, s{st}, {2*self.n}
        v_writelane_b32 v{self.v}, s{st+2}, {2*self.n+1}""")
        self.n += 1; self.names.append(name)
        assert self.n <= 32
    def flush(self, srd, vtmp, swave, nw):
        if not C.PROF: return
        st = self.st
        self.a(f"""s_mul_i32 s{st}, s2, {nw}
        s_add_u32 s{st}, s{st}, s{swave}
        s_lshl_b32 s{st}, s{st}, 8
        s_add_u32 s{st}, s{st}, {PROF_OFF + self.k * (1 << 20)}
        v_lshlrev_b32 v{vtmp}, 2, v1
        buffer_store_dword v{self.v}, v{vtmp}, s[{srd}:{srd+3}], s{st} offen""")
        PROFNAMES[self.k] = (nw, self.names)
PROFNAMES = {}

def srd(a, base_lo, base_hi, nrec):
    return f"""s_mov_b32 s{a}, {base_lo}
s_mov_b32 s{a+1}, {base_hi}
s_mov_b32 s{a+2}, {nrec}
s_mov_b32 s{a+3}, 0x20000"""

def gen_k0():
    a = S()
    pf = Prof(a, 87, 0, 48)
    a("""
    s_cmp_ge_u32 s2, 256
    s_cbranch_scc1 L0_end
    """)
    pf.stamp('start')
    a("""
    s_load_dwordx2 s[4:5], s[0:1], 0
    s_load_dwordx2 s[6:7], s[0:1], 88
    s_load_dwordx2 s[24:25], s[0:1], 8
    s_load_dwordx2 s[28:29], s[0:1], 40
    s_load_dwordx2 s[32:33], s[0:1], 16
    s_load_dwordx2 s[36:37], s[0:1], 48
    s_load_dwordx2 s[44:45], s[0:1], 64
    v_and_b32 v1, 63, v0              ; lane
    v_lshrrev_b32 v2, 6, v0           ; wave
    v_bfe_u32 v3, v1, 4, 1            ; r
    v_and_b32 v4, 15, v1              ; j
    v_lshrrev_b32 v5, 5, v1           ; hi
    s_lshl_b32 s3, s2, 3
    v_lshl_add_u32 v6, v2, 1, v3
    v_add_u32 v6, s3, v6              ; m
    v_lshrrev_b32 v7, 1, v4           ; j>>1
    v_and_b32 v60, 1, v4              ; j&1
    v_lshlrev_b32 v61, 2, v7
    v_lshl_add_u32 v61, v5, 1, v61
    v_add_u32 v61, v61, v60           ; piece
    v_lshlrev_b32 v61, 4, v61
    v_lshl_add_u32 v61, v6, 11, v61   ; voff_in
    s_mov_b32 s10, 4194304
    s_mov_b32 s11, 0x20000
    s_waitcnt lgkmcnt(0)
    s_mov_b32 s8, s4
    s_mov_b32 s9, s5
    """)
    for i in range(4):
        a(f"buffer_load_dwordx4 v[{8+4*i}:{11+4*i}], v61, s[8:11], 0 offen offset:{512*i} ;@X")
    a(srd(12, 's6', 's7', WS_RANGE))
    if C.PD:
        a(f"""
        s_and_b32 s21, s2, 7              ; x
        s_lshr_b32 s22, s2, 3             ; j
        v_lshrrev_b32 v80, 3, v0          ; stage
        v_and_b32 v81, 7, v0              ; l
        v_lshl_add_u32 v82, v80, 5, s22   ; row
        v_mul_u32_u24 v83, 6144, v82
        v_lshrrev_b32 v84, 1, v81
        v_lshl_add_u32 v83, v84, 11, v83
        v_and_b32 v84, 1, v81
        v_lshl_add_u32 v83, v84, 7, v83
        s_lshl_b32 s23, s21, 8
        v_add_u32 v83, s23, v83
        v_mul_u32_u24 v84, 7168, v82
        s_mul_i32 s23, s21, 768
        v_lshl_add_u32 v85, v81, 7, s23
        s_lshl_b32 s23, s21, 7
        s_add_u32 s23, s23, 6144
        v_mov_b32 v86, s23
        v_cmp_gt_u32 vcc, 6, v81
        v_cndmask_b32 v85, v86, v85, vcc
        v_add_u32 v84, v84, v85           ; w1 offset
        v_mov_b32 v86, {OOB}
        v_cndmask_b32 v83, v86, v83, vcc
        v_cmp_gt_u32 vcc, 7, v81
        v_cndmask_b32 v84, v86, v84, vcc
        v_cmp_gt_u32 vcc, {C.PD}, v80
        v_cndmask_b32 v83, v86, v83, vcc
        v_cndmask_b32 v84, v86, v84, vcc
        s_mov_b32 s26, 6291456
        s_mov_b32 s27, 0x20000
        s_mov_b32 s30, 7340032
        s_mov_b32 s31, 0x20000
        buffer_load_dword v85, v83, s[24:27], 0 offen
        buffer_load_dword v86, v84, s[28:31], 0 offen
        s_mov_b32 s34, 65536
        s_mov_b32 s35, 0x20000
        s_mov_b32 s38, 7168
        s_mov_b32 s39, 0x20000
        s_mov_b32 s46, 2048
        s_mov_b32 s47, 0x20000
        v_lshlrev_b32 v80, 7, v0
        s_lshl_b32 s23, s2, 15
        buffer_load_dword v81, v80, s[32:35], s23 offen
        buffer_load_dword v82, v80, s[36:39], s23 offen
        buffer_load_dword v83, v80, s[44:47], s23 offen
        """)
    a(f"""
    v_lshl_add_u32 v62, v60, 1, v5    ; g
    v_lshlrev_b32 v62, 4, v62
    v_and_b32 v63, 15, v6
    v_add_u32 v62, v62, v63
    v_lshlrev_b32 v62, 4, v62         ; (g*16 + m&15)*16
    v_lshl_add_u32 v62, v7, 11, v62   ; + (j>>1)*2048
    v_bfe_u32 v63, v6, 4, 1
    v_lshl_add_u32 v62, v63, 10, v62  ; + mb*1024
    v_lshrrev_b32 v63, 5, v6
    v_lshl_add_u32 v62, v63, 16, v62  ; + m32blk*65536
    v_mov_b32 v56, 0
    v_mov_b32 v57, 0
    v_mov_b32 v58, 0
    v_mov_b32 v59, 0
    v_lshlrev_b32 v2, 4, v0
    s_lshl_b32 s16, s2, 12
    s_add_u32 s16, s16, {FLAG_OFF}
    s_cmp_lt_u32 s2, {FLAG_BYTES // 4096}
    s_cselect_b32 s16, s16, {OOB}
    buffer_store_dwordx4 v[56:59], v2, s[12:15], s16 offen
    s_mov_b32 s17, 0xffff0000
    s_mov_b32 s18, 16384
    s_mov_b32 s19, 32768
    s_mov_b32 s20, 49152
    WAIT X
    """)
    pf.stamp('xloaded')
    F = 24
    for k in range(16):
        a(f"v_lshlrev_b32 v{F+2*k}, 16, v{8+k}")
        a(f"v_and_b32 v{F+2*k+1}, s17, v{8+k}")
    def tree(src):
        for k in range(8):
            a(f"v_pk_add_f32 v[{8+2*k}:{9+2*k}], v[{src+4*k}:{src+4*k+1}], v[{src+4*k+2}:{src+4*k+3}]")
        n = 8
        while n > 1:
            for k in range(n // 2):
                a(f"v_pk_add_f32 v[{8+2*k}:{9+2*k}], v[{8+4*k}:{9+4*k}], v[{8+4*k+2}:{8+4*k+3}]")
            n //= 2
        a("v_add_f32 v56, v8, v9")
    def xlane():
        for r in (8, 4, 2, 1):
            a(f"v_add_f32 v56, v56, v56 row_ror:{r}")
        a("v_mov_b32 v57, v56")
        a("v_permlane32_swap_b32 v56, v57")
        a("v_add_f32 v56, v56, v57")
    tree(F); xlane()
    a("v_mul_f32 v58, 0x3a800000, v56")
    a("v_mov_b32 v59, v58")
    for k in range(16):
        a(f"v_pk_add_f32 v[{8+2*(k%8)}:{9+2*(k%8)}], v[{F+2*k}:{F+2*k+1}], v[58:59] NEG")
        if k < 8:
            a(f"v_pk_mul_f32 v[{64+2*k}:{65+2*k}], v[{8+2*k}:{9+2*k}], v[{8+2*k}:{9+2*k}]")
        else:
            kk = k - 8
            a(f"v_pk_fma_f32 v[{64+2*kk}:{65+2*kk}], v[{8+2*kk}:{9+2*kk}], v[{8+2*kk}:{9+2*kk}], v[{64+2*kk}:{65+2*kk}]")
    n = 8
    while n > 1:
        for k in range(n // 2):
            a(f"v_pk_add_f32 v[{64+2*k}:{65+2*k}], v[{64+4*k}:{65+4*k}], v[{64+4*k+2}:{64+4*k+3}]")
        n //= 2
    a("v_add_f32 v56, v64, v65")
    xlane()
    a("""
    v_mul_f32 v56, 0x3a800000, v56        ; var
    v_cvt_pk_bf16_f32 v56, 0, v56         ; var_bf
    v_cvt_pk_bf16_f32 v58, 0, v58         ; mean_bf
    v_add_f32 v56, 0x3727c5ac, v56        ; + 1e-5
    v_cvt_pk_bf16_f32 v56, 0, v56
    v_sqrt_f32 v56, v56
    v_cvt_pk_bf16_f32 v56, 0, v56
    v_rcp_f32 v56, v56
    v_mov_b32 v59, v58
    v_mov_b32 v57, v56
    """)
    for k in range(16):
        a(f"v_pk_add_f32 v[{F+2*k}:{F+2*k+1}], v[{F+2*k}:{F+2*k+1}], v[58:59] NEG")
    for k in range(32):
        a(f"v_cvt_pk_bf16_f32 v{F+k}, 0, v{F+k}")
    so = ['0', 's18', 's19', 's20']
    for i in range(4):
        for k in range(4 * i, 4 * i + 4):
            a(f"v_pk_mul_f32 v[{F+2*k}:{F+2*k+1}], v[{F+2*k}:{F+2*k+1}], v[56:57]")
        for k in range(4 * i, 4 * i + 4):
            a(f"v_cvt_pk_bf16_f32 v{8+k}, v{F+2*k}, v{F+2*k+1}")
        if i > 0:
            b = 8 + 4 * (i - 1)
            a(f"v_permlane32_swap_b32 v{b}, v{b+2}")
            a(f"v_permlane32_swap_b32 v{b+1}, v{b+3}")
            a(f"buffer_store_dwordx4 v[{b}:{b+3}], v62, s[12:15], {so[i-1]} offen")
    b = 20
    a(f"v_permlane32_swap_b32 v{b}, v{b+2}")
    a(f"v_permlane32_swap_b32 v{b+1}, v{b+3}")
    a(f"buffer_store_dwordx4 v[{b}:{b+3}], v62, s[12:15], {so[3]} offen")
    if C.PROF:
        pf.stamp('stored')
        a("s_waitcnt vmcnt(0)")
        pf.stamp('end')
        a("v_lshrrev_b32 v2, 6, v0")
        a("v_readfirstlane_b32 s3, v2")
        pf.flush(12, 2, 3, 4)
    a("L0_end:")
    a("s_endpgm")
    return a, 88, 56

vL, vA, vD1, vD2 = 1, 2, 3, 4
vQe, vQo, vH = 5, 6, 7
vDUM, vPROF = 12, 13
B1, WP = 14, 28
AR, BF, ACC = 36, 100, 152
acc = lambda mb, nb: ACC + (mb * 13 + nb) * 4
SLOT1 = 14336
WPHI = 161792
LDS_MAIN = 163840
KFQ, PK, E, ST, TT = 36, 52, 68, 100, 108
PH = PK
vTW, vTR, vONE, vSEL = 7, 8, 5, 6
LAB = [0]
def lab(p):
    LAB[0] += 1
    return f"L{p}{LAB[0]}"

def k1_setup(a, pf):
    t = 36
    for n in range(448):
        assert (n * 5462) >> 16 == n // 12 and (n * 4682) >> 16 == n // 14
    a(f"""
    s_load_dwordx2 s[8:9], s[0:1], 88      ; ws
    s_load_dwordx2 s[4:5], s[0:1], 8       ; wqkv
    s_load_dwordx2 s[6:7], s[0:1], 40      ; w1
    s_load_dwordx2 s[10:11], s[0:1], 16    ; wphi
    s_load_dwordx2 s[12:13], s[0:1], 48    ; b1
    s_load_dwordx2 s[14:15], s[0:1], 56    ; w2
    s_load_dwordx2 s[60:61], s[0:1], 24    ; wo
    s_load_dwordx2 s[62:63], s[0:1], 0     ; x
    s_load_dwordx2 s[64:65], s[0:1], 64    ; b2
    s_load_dwordx2 s[66:67], s[0:1], 72    ; out
    v_lshrrev_b32 v{t}, 6, v0
    v_and_b32 v{vL}, 63, v0
    v_readfirstlane_b32 s36, v{t}          ; wave
    s_and_b32 s46, s2, 7                   ; x
    s_lshr_b32 s47, s2, 3                  ; j
    s_lshl_b32 s37, s46, 2
    s_lshr_b32 s48, s47, 3
    s_add_u32 s37, s37, s48                ; head
    s_and_b32 s38, s47, 7                  ; mtile
    v_lshlrev_b32 v{vA}, 4, v{vL}
    s_lshl_b32 s39, s38, 3
    s_add_u32 s39, s39, s36                ; m32blk
    s_lshl_b32 s40, s36, 10                ; m0 base 1
    ; ---- dma voffsets : Bq formula with ci = 64*w + l
    s_lshl_b32 s48, s36, 6
    v_add_u32 v{t}, s48, v{vL}                 ; ci
    v_mul_u32_u24 v{t+1}, 5462, v{t}
    v_lshrrev_b32 v{t+1}, 16, v{t+1}        ; row
    v_mul_u32_u24 v{t+2}, 12, v{t+1}
    v_sub_u32 v{t+2}, v{t}, v{t+2}       ; pos
    v_bfe_u32 v{t+3}, v{t+1}, 2, 1
    v_lshlrev_b32 v{t+3}, 1, v{t+3}
    v_xor_b32 v{t+2}, v{t+2}, v{t+3}     ; cc
    v_mul_u32_u24 v{vD1}, 6144, v{t+1}
    v_lshrrev_b32 v{t+3}, 2, v{t+2}
    v_lshl_add_u32 v{vD1}, v{t+3}, 11, v{vD1}
    v_and_b32 v{t+3}, 3, v{t+2}
    v_lshl_add_u32 v{vD1}, v{t+3}, 4, v{vD1}
    s_lshl_b32 s48, s37, 6
    v_add_u32 v{vD1}, s48, v{vD1}
    """)
    def bh_off(dst, ci_s):
        a(f"""
        v_add_u32 v{t}, {ci_s}, v{vL}
        v_mul_u32_u24 v{t+1}, 4682, v{t}
        v_lshrrev_b32 v{t+1}, 16, v{t+1}        ; row
        v_mul_u32_u24 v{t+2}, 14, v{t+1}
        v_sub_u32 v{t+2}, v{t}, v{t+2}       ; cc
        v_mul_u32_u24 v{dst}, 7168, v{t+1}
        v_lshl_add_u32 v{dst}, v{t+2}, 4, v{dst}
        v_mov_b32 v{t+3}, s49
        v_mov_b32 v{t+4}, s50
        v_cmp_gt_u32 vcc, 12, v{t+2}
        v_cndmask_b32 v{t+3}, v{t+4}, v{t+3}, vcc
        v_add_u32 v{dst}, v{dst}, v{t+3}
        """)
    a(f"""
    s_mul_i32 s49, s37, 192
    s_lshl_b32 s50, s37, 5
    s_add_u32 s50, s50, {6144-192}
    s_lshl_b32 s48, s36, 6
    """)
    bh_off(vD2, 's48')
    a(f"""
    s_cmp_lt_u32 s36, 6
    s_cbranch_scc1 L1_dok
    v_mov_b32 v{vD1}, v{vD2}
    v_mov_b32 v{vD2}, {OOB}
    s_cmp_eq_u32 s36, 6
    s_cbranch_scc1 L1_dok
    s_add_u32 s48, s47, {32*C.PD}          ; row
    v_mov_b32 v{t+5}, {OOB}
    v_cmp_lt_u32 vcc, 5, v{vL}
    v_mov_b32 v{t+6}, 0
    v_cndmask_b32 v{t}, v{t+6}, 1, vcc     ; r = l/6
    v_mul_u32_u24 v{t+1}, 6, v{t}
    v_sub_u32 v{t+1}, v{vL}, v{t+1}        ; c
    v_lshl_add_u32 v{t}, v{t}, 5, s48      ; row
    v_mul_u32_u24 v{vD1}, 6144, v{t}
    v_lshrrev_b32 v{t+2}, 1, v{t+1}
    v_lshl_add_u32 v{vD1}, v{t+2}, 11, v{vD1}
    v_and_b32 v{t+2}, 1, v{t+1}
    v_lshl_add_u32 v{vD1}, v{t+2}, 7, v{vD1}
    s_lshl_b32 s50, s46, 8
    v_add_u32 v{vD1}, s50, v{vD1}
    v_cmp_gt_u32 vcc, 12, v{vL}
    s_nop 1
    v_cndmask_b32 v{vD1}, v{t+5}, v{vD1}, vcc
    v_cmp_lt_u32 vcc, 6, v{vL}
    s_nop 1
    v_cndmask_b32 v{t}, v{t+6}, 1, vcc     ; r = l/7
    v_mul_u32_u24 v{t+1}, 7, v{t}
    v_sub_u32 v{t+1}, v{vL}, v{t+1}        ; c
    v_lshl_add_u32 v{t}, v{t}, 5, s48      ; row
    v_mul_u32_u24 v{vD2}, 7168, v{t}
    s_mul_i32 s49, s46, 768
    v_lshl_add_u32 v{t+2}, v{t+1}, 7, s49
    s_lshl_b32 s49, s46, 7
    s_add_u32 s49, s49, 6144
    v_mov_b32 v{t+3}, s49
    v_cmp_gt_u32 vcc, 6, v{t+1}
    s_nop 1
    v_cndmask_b32 v{t+2}, v{t+3}, v{t+2}, vcc
    v_add_u32 v{vD2}, v{vD2}, v{t+2}
    v_cmp_gt_u32 vcc, 14, v{vL}
    s_nop 1
    v_cndmask_b32 v{vD2}, v{t+5}, v{vD2}, vcc
    L1_dok:
    ; ---- tr read addrs
    v_lshrrev_b32 v{t}, 2, v{vL}
    v_and_b32 v{t+1}, 3, v{vL}
    v_lshlrev_b32 v{t+1}, 3, v{t+1}         ; (l&3)*8
    v_mul_u32_u24 v{vH}, 224, v{t}
    v_add_u32 v{vH}, v{vH}, v{t+1}
    v_add_u32 v{vH}, 6144, v{vH}
    v_mul_u32_u24 v{vQe}, 192, v{t}
    v_add_u32 v{vQe}, v{vQe}, v{t+1}
    v_bfe_u32 v{t+2}, v{vL}, 4, 1
    v_lshlrev_b32 v{t+2}, 5, v{t+2}
    v_sub_u32 v{vQo}, v{vQe}, v{t+2}
    v_add_u32 v{vQe}, v{vQe}, v{t+2}
    v_add_u32 v{vQe+3}, {4*SLOT1}, v{vQe}
    v_add_u32 v{vQo+3}, {4*SLOT1}, v{vQo}
    v_add_u32 v{vH+3}, {4*SLOT1}, v{vH}
    v_lshl_add_u32 v11, v{t}, 6, v{t+1}
    v_add_u32 v11, {WPHI}, v11
    ; b1 offset (v12): g*8
    v_lshrrev_b32 v{vDUM}, 4, v{vL}
    v_lshlrev_b32 v{vDUM}, 3, v{vDUM}
    s_mov_b32 s18, 65536
    s_mov_b32 s19, 0x20000
    s_mov_b32 s23, 0x20000
    s_mov_b32 s27, 0x20000
    s_lshl_b32 s48, s39, 16
    s_mov_b32 s41, 0                       ; A soffset
    s_waitcnt lgkmcnt(0)
    s_add_u32 s16, s8, s48
    s_addc_u32 s17, s9, 0
    s_cmp_lg_u32 s36, 6
    s_cselect_b32 s20, s4, s6
    s_cselect_b32 s21, s5, s7
    s_mov_b32 s22, {1024*7168}
    s_cselect_b32 s22, {1024*6144}, s22
    s_mov_b32 s45, {32*7168}
    s_cselect_b32 s45, {32*6144}, s45
    s_cselect_b32 s68, s40, 12288          ; m0 base 1
    s_mov_b32 s24, s6
    s_mov_b32 s25, s7
    s_mov_b32 s26, {1024*7168}
    s_mov_b32 s51, {32*7168}
    s_add_u32 s44, s40, 6144               ; m0 base 2
    s_cmp_lt_u32 s36, 6
    s_cselect_b32 s44, s44, 13312
    s_sub_u32 s42, 0, s45
    s_sub_u32 s43, 0, s51
    s_cmp_eq_u32 s36, 7
    s_cselect_b32 s68, 13312, s68
    s_cselect_b32 s45, {64*6144}, s45
    s_cselect_b32 s51, {64*7168}, s51
    s_cselect_b32 s42, {(-(C.U0+1)*64*6144) & 0xffffffff}, s42
    s_cselect_b32 s43, {(-(C.U0+1)*64*7168) & 0xffffffff}, s43
    """)

def k1_switch():
    nops = 32 - C.USW
    n2 = -(-224 // nops); no = -(-64 // nops)
    if not C.W2PF: n2 = no = 0
    return f"""{{
    s_cmp_lg_u32 s36, 7
    s_cbranch_scc1 L1_nosw
    s_mov_b32 s20, s14
    s_mov_b32 s21, s15
    s_mov_b32 s22, {3584*2048}
    s_mov_b32 s45, {n2*128}
    s_mov_b32 s42, {(-n2*128) & 0xffffffff}
    s_mov_b32 s24, s60
    s_mov_b32 s25, s61
    s_mov_b32 s26, {1024*2048}
    s_mov_b32 s51, {no*128}
    s_mov_b32 s43, {(-no*128) & 0xffffffff}
    s_mul_i32 s48, s2, 28672
    s_lshl_b32 s49, s2, 13
    v_lshlrev_b32 v{vD1}, 7, v{vL}
    v_add_u32 v{vD2}, s49, v{vD1}
    v_add_u32 v{vD1}, s48, v{vD1}
    v_cmp_le_u32 vcc, {n2}, v{vL}
    v_mov_b32 v0, {OOB}
    s_nop 0
    v_cndmask_b32 v{vD1}, v{vD1}, v0, vcc
    v_cmp_le_u32 vcc, {no}, v{vL}
    s_nop 1
    v_cndmask_b32 v{vD2}, v{vD2}, v0, vcc
    L1_nosw:
    }}"""

def k1_loadB(u):
    sl = (u + 4) % 8
    return ([k1_switch()] if u == C.USW else []) + [f"""{{
        s_add_u32 m0, s68, {sl*SLOT1}
        s_add_u32 s42, s42, s45
        buffer_load_dwordx4 v{vD1}, s[20:23], s42 offen lds ;@B{u}
        }}""", f"""{{
        s_add_u32 m0, s44, {sl*SLOT1}
        s_add_u32 s43, s43, s51
        buffer_load_dwordx4 v{vD2}, s[24:27], s43 offen lds ;@B{u}
        }}"""]
def k1_loadA(u):
    sl = u % 8; o = (u & 1) * 2048
    g3 = f"buffer_load_dwordx4 v[{AR+sl*8}:{AR+sl*8+3}], v{vA}, s[16:19], s41 offen offset:{o} ;@A{u}"
    g4 = f"buffer_load_dwordx4 v[{AR+sl*8+4}:{AR+sl*8+7}], v{vA}, s[16:19], s41 offen offset:{o+1024} ;@A{u}"
    if u & 1: g4 += "\ns_add_u32 s41, s41, 4096"
    return [g3, g4]
def k1_reads(nb, u):
    sl = (u + 4) % 8
    up = 3 if sl >= 4 else 0
    base = (sl % 4) * SLOT1
    if nb < 6:
        reg = (vQo if nb & 1 else vQe) + up; o0 = base + 32 * nb; o1 = o0 + 3072
    else:
        reg = vH + up; o0 = base + 32 * (nb - 6); o1 = o0 + 3584
    return f"""ds_read_b64_tr_b16 v[{BF+nb*4}:{BF+nb*4+1}], v{reg} offset:{o0} ;@R{u}_{nb}
    ds_read_b64_tr_b16 v[{BF+nb*4+2}:{BF+nb*4+3}], v{reg} offset:{o1} ;@R{u}_{nb}"""

def k1_loop(a, pf, extra=None):
    NS = 32
    bars = [s for s in range(NS) if (s < 4 or not C.BAR2 or s % 2 == 0)]
    lastbar = lambda s: max(b for b in bars if b <= s)
    nextbar = lambda s: min([b for b in bars if b > s] + [NS])
    pre = [0, 1, 2]
    planB = {s: [] for s in range(NS)}; planA = {s: [] for s in range(NS)}
    nb_ = na_ = len(pre)
    for s in range(NS):
        k = 0
        while nb_ < NS and nb_ <= min(s + 6, lastbar(s) + 7) and k < 2: planB[s].append(nb_); nb_ += 1; k += 1
        k = 0
        while na_ < NS and na_ <= s + 7 and k < 2: planA[s].append(na_); na_ += 1; k += 1
    for u in pre:
        for g in k1_loadA(u) + k1_loadB(u) if u == 0 else k1_loadB(u) + k1_loadA(u): a(g)
    a(srd(28, 's8', 's9', WS_RANGE))
    a(srd(32, 's10', 's11', 65536))
    a(srd(52, 's12', 's13', 7168))
    a(f"""
    s_and_b32 s49, s36, 1
    s_lshl_b32 s49, s49, 10
    s_add_u32 s58, s49, {WPHI}
    s_lshl_b32 s59, s37, 11
    s_add_u32 s59, s59, s49
    s_mul_i32 s56, s37, 192
    s_lshl_b32 s57, s37, 5
    s_add_u32 s57, s57, 6144
    """)
    extra = dict(extra or {})
    extra.setdefault(8, []).append(f"""{{
    s_mov_b32 m0, s58
    s_nop 0
    buffer_load_dwordx4 v{vA}, s[32:35], s59 offen lds ;@WPH
    }}""")
    for i in range(6):
        extra.setdefault(9 + i // 2, []).append(f"buffer_load_dwordx2 v[{B1+2*i}:{B1+2*i+1}], v{vDUM}, s[52:55], s56 offen offset:{32*i} ;@BIAS")
    extra.setdefault(12, []).append(f"buffer_load_dwordx2 v[{B1+12}:{B1+13}], v{vDUM}, s[52:55], s57 offen ;@BIAS")
    a.at_hook("k1pre16", "WAIT WPH")
    sd = Side()
    for fb in range(2):
        for jj in range(2):
            sd(f"ds_read_b64_tr_b16 v[{WP+fb*4+jj*2}:{WP+fb*4+jj*2+1}], v11 offset:{fb*32+jj*1024} ;@WP")
    early = C.BURST and C.BURST < 12
    vb = 29 if early else 11; vt = 30 if early else vDUM; sb = 76 if early else 52; so_ = 69 if early else 58
    sd2 = Side()
    sd2(f"""
    s_mul_i32 s48, s2, 28672
    s_lshl_b32 s49, s36, 12
    s_add_u32 s48, s48, s49
    s_lshl_b32 s49, s2, 13
    {{
    s_cmp_eq_u32 s36, 7
    s_cselect_b32 s{sb}, s60, s14
    s_cselect_b32 s{sb+1}, s61, s15
    s_mov_b32 s{sb+2}, {3584*2048}
    s_cselect_b32 s{sb+2}, {1024*2048}, s{sb+2}
    s_cselect_b32 s{so_}, s49, s48
    s_cselect_b32 s49, {64//C.BN}, {32//C.BN}
    }}
    s_lshl_b32 s90, s49, 7
    s_mov_b32 s{sb+3}, 0x20000
    v_lshlrev_b32 v{vb}, 7, v{vL}
    v_mov_b32 v{vt}, {OOB}
    v_cmp_gt_u32 vcc, s49, v{vL}
    GAP 1
    v_cndmask_b32 v{vb}, v{vt}, v{vb}, vcc
    """)
    if C.BURST:
        for k in range(C.BN):
            extra.setdefault(C.BURST + k * C.BS, []).insert(0, f"buffer_load_dword v0, v{vb}, s[{sb}:{sb+3}], s{so_} offen\ns_add_u32 s{so_}, s{so_}, s90")
    if C.WB >= 0:
        t = 31
        a(f"""
        s_lshr_b32 s48, s36, 1
        s_mul_i32 s48, s48, {C.WBG//4}
        s_add_u32 s48, s48, {C.PD}
        v_lshrrev_b32 v{t}, 3, v{vL}
        v_add_u32 v{t}, s48, v{t}              ; stage
        v_and_b32 v{t+1}, 7, v{vL}
        v_lshl_add_u32 v{t+2}, v{t}, 5, s47    ; row
        s_and_b32 s48, s36, 1
        s_cmp_eq_u32 s48, 0
        s_cbranch_scc0 L1_pfw1
        v_mul_u32_u24 v28, 6144, v{t+2}
        v_lshrrev_b32 v{t+3}, 1, v{t+1}
        v_lshl_add_u32 v28, v{t+3}, 11, v28
        v_and_b32 v{t+3}, 1, v{t+1}
        v_lshl_add_u32 v28, v{t+3}, 7, v28
        s_lshl_b32 s48, s46, 8
        v_add_u32 v28, s48, v28
        s_mov_b32 s80, s4
        s_mov_b32 s81, s5
        s_mov_b32 s82, {1024*6144}
        s_mov_b32 s48, 6
        s_mov_b32 s85, {C.WBG*32*6144}
        s_branch L1_pfj
        L1_pfw1:
        v_mul_u32_u24 v28, 7168, v{t+2}
        s_mul_i32 s48, s46, 768
        v_lshl_add_u32 v{t+3}, v{t+1}, 7, s48
        s_lshl_b32 s48, s46, 7
        s_add_u32 s48, s48, 6144
        v_mov_b32 v{t+4}, s48
        v_cmp_gt_u32 vcc, 6, v{t+1}
        s_nop 1
        v_cndmask_b32 v{t+3}, v{t+4}, v{t+3}, vcc
        v_add_u32 v28, v28, v{t+3}
        s_mov_b32 s80, s6
        s_mov_b32 s81, s7
        s_mov_b32 s82, {1024*7168}
        s_mov_b32 s48, 7
        s_mov_b32 s85, {C.WBG*32*7168}
        L1_pfj:
        s_mov_b32 s83, 0x20000
        v_mov_b32 v{t+4}, {OOB}
        v_cmp_gt_u32 vcc, s48, v{t+1}
        s_nop 1
        v_cndmask_b32 v28, v{t+4}, v28, vcc
        v_cmp_gt_u32 vcc, {2*C.WBG}, v{vL}
        s_mov_b32 s84, 0
        s_nop 0
        v_cndmask_b32 v28, v{t+4}, v28, vcc
        """)
        ld = "buffer_load_dword v0, v28, s[80:83], s84 offen\ns_add_u32 s84, s84, s85"
        for k in range(-(-(32 - C.PD) // C.WBG)):
            assert C.WB + k * C.WBS < 16
            extra.setdefault(C.WB + k * C.WBS, []).append(ld)
    pf.stamp('issued')
    a("WAIT B0")
    a("s_barrier")
    for nb in range(13): a(k1_reads(nb, 0))
    pf.stamp('first')
    for s in range(NS):
        if C.FINE1 and s in (2, 4, 8, 12, 16, 20, 24, 28): pf.stamp(f'k{s}')
        a.hook(f"k1pre{s}")
        need = [u for u in range(s + 1, min(nextbar(s), NS - 1) + 1)] if s in bars else []
        a(f"WAIT A{s}" + ''.join(f" B{u}" for u in need))
        if s in bars: a("s_barrier")
        lg = []
        for u in planB[s]: lg += k1_loadB(u)
        for u in planA[s]: lg += k1_loadA(u)
        if extra and s in extra: lg += extra[s]
        pos = {}
        for i, g in enumerate(lg): pos.setdefault(1 + (i * 11) // max(len(lg), 6), []).append(g)
        for nb in range(13):
            if nb == 0: a(f"WAIT R{s}_8")
            if nb == 9: a(f"WAIT R{s}_12")
            for mb in range(2):
                ar = AR + (s % 8) * 8 + mb * 4
                c = '0' if s == 0 else f"v[{acc(mb,nb)}:{acc(mb,nb)+3}]"
                a(f"v_mfma_f32_16x16x32_bf16 v[{acc(mb,nb)}:{acc(mb,nb)+3}], v[{BF+nb*4}:{BF+nb*4+3}], v[{ar}:{ar+3}], {c}")
                a.slot(s + (nb * 2 + mb) / 26.0)
            if s + 1 < NS: a(k1_reads(nb, s + 1))
            for g in pos.get(nb, []): a(g)
    a.place(sd, 16, 18)
    if early: a.place(sd2, C.BURST - 3, C.BURST - 1)
    else: a.place(sd2, 18, 19.9)

def packfrag(a, dst, r0, r1):
    a(f"v_cvt_pk_bf16_f32 v{dst}, v{r0}, v{r0+1}")
    a(f"v_cvt_pk_bf16_f32 v{dst+1}, v{r0+2}, v{r0+3}")
    a(f"v_cvt_pk_bf16_f32 v{dst+2}, v{r1}, v{r1+1}")
    a(f"v_cvt_pk_bf16_f32 v{dst+3}, v{r1+2}, v{r1+3}")
def red4(a, op, q):
    A_, B_, C_, D_ = q
    a(f"v_permlane32_swap_b32 v{A_}, v{B_}")
    a(f"v_permlane32_swap_b32 v{C_}, v{D_}")
    a(f"{op} v{A_}, v{A_}, v{B_}")
    a(f"{op} v{C_}, v{C_}, v{D_}")
    a(f"v_permlane16_swap_b32 v{A_}, v{C_}")
    a(f"{op} v{A_}, v{A_}, v{C_}")
    a(f"v_mov_b32 v{C_}, v{A_}")
    a(f"v_permlane16_swap_b32 v{A_}, v{C_}")
    a(f"v_mov_b32 v{B_}, v{A_}")
    a(f"v_mov_b32 v{D_}, v{C_}")
    a(f"v_permlane32_swap_b32 v{A_}, v{B_}")
    a(f"v_permlane32_swap_b32 v{C_}, v{D_}")
def feature_map(a, kf, pk):
    for mb in range(2):
        for fb in range(2):
            r = PK + (mb * 2 + fb) * 4
            a(f"v_mfma_f32_16x16x32_bf16 v[{r}:{r+3}], v[{WP+fb*4}:{WP+fb*4+3}], v[{kf(mb)}:{kf(mb)+3}], 0")
    a("GAP 6")
    for k in range(16): a(f"v_cvt_pk_bf16_f32 v{PK+k}, 0, v{PK+k}")
    for mb in range(2):
        r = PK + mb * 8
        mx, mn = ST + 2 * mb, ST + 2 * mb + 1
        a(f"v_max3_f32 v{mx}, v{r}, v{r+1}, v{r+2}")
        a(f"v_min3_f32 v{mn}, v{r}, v{r+1}, v{r+2}")
        a(f"v_max3_f32 v{mx}, v{mx}, v{r+3}, v{r+4}")
        a(f"v_min3_f32 v{mn}, v{mn}, v{r+3}, v{r+4}")
        a(f"v_max3_f32 v{mx}, v{mx}, v{r+5}, v{r+6}")
        a(f"v_min3_f32 v{mn}, v{mn}, v{r+5}, v{r+6}")
        a(f"v_max_f32 v{mx}, v{mx}, v{r+7}")
        a(f"v_max_f32 v{mn}, -v{mn}, -v{r+7}")
    red4(a, "v_max_f32", [ST, ST + 1, ST + 2, ST + 3])
    for k in range(4): a(f"v_mul_f32 v{ST+k}, s56, v{ST+k}")
    for mb in range(2):
        for sg in range(2):
            e0 = E + (mb * 2 + sg) * 8; p0 = PK + mb * 8
            if pk:
                for k in range(0, 8, 2):
                    a(f"v_pk_fma_f32 v[{e0+k}:{e0+k+1}], v[{p0+k}:{p0+k+1}], s[56:57], v[{ST+2*mb}:{ST+2*mb+1}] op_sel:[0,0,{sg}] op_sel_hi:[1,0,{sg}] neg_lo:[{sg},0,1] neg_hi:[{sg},0,1]")
            else:
                for k in range(8):
                    a(f"v_fma_f32 v{e0+k}, {'-' if sg else ''}v{p0+k}, s56, -v{ST+2*mb+sg}")
            for k in range(8): a(f"v_exp_f32 v{e0+k}, v{e0+k}")
    for q in range(4):
        e = E + q * 8; s_ = ST + 4 + q
        if pk:
            a(f"v_pk_add_f32 v[{TT}:{TT+1}], v[{e}:{e+1}], v[{e+2}:{e+3}]")
            a(f"v_pk_add_f32 v[{TT+2}:{TT+3}], v[{e+4}:{e+5}], v[{e+6}:{e+7}]")
            a(f"v_pk_add_f32 v[{TT}:{TT+1}], v[{TT}:{TT+1}], v[{TT+2}:{TT+3}]")
            a(f"v_add_f32 v{s_}, v{TT}, v{TT+1}")
        else:
            a(f"v_add_f32 v{TT}, v{e}, v{e+2}")
            a(f"v_add_f32 v{TT+1}, v{e+1}, v{e+3}")
            a(f"v_add_f32 v{TT+2}, v{e+4}, v{e+6}")
            a(f"v_add_f32 v{TT+3}, v{e+5}, v{e+7}")
            a(f"v_add_f32 v{TT}, v{TT}, v{TT+2}")
            a(f"v_add_f32 v{TT+1}, v{TT+1}, v{TT+3}")
            a(f"v_add_f32 v{s_}, v{TT}, v{TT+1}")
    red4(a, "v_add_f32", [ST + 4, ST + 5, ST + 6, ST + 7])
    for q in range(4): a(f"v_rcp_f32 v{ST+4+q}, v{ST+4+q}")
    for q in range(4):
        e = E + q * 8
        if pk:
            sp = ST + 4 + (q & ~1); o = q & 1
            for k in range(0, 8, 2):
                a(f"v_pk_mul_f32 v[{e+k}:{e+k+1}], v[{e+k}:{e+k+1}], v[{sp}:{sp+1}] op_sel:[0,{o}] op_sel_hi:[1,{o}]")
        else:
            for k in range(8): a(f"v_mul_f32 v{e+k}, v{ST+4+q}, v{e+k}")
        for k in range(4): a(f"v_cvt_pk_bf16_f32 v{PH+q*4+k}, v{e+2*k}, v{e+2*k+1}")

def post_setup(a):
    t = TT
    a(f"""
    s_mov_b32 s56, {LOG2E}
    s_mov_b32 s57, 0xffff0000
    v_lshrrev_b32 v{t}, 4, v{vL}               ; g
    v_and_b32 v{t+1}, 15, v{vL}                ; m
    s_lshl_b32 s48, s36, 5
    v_add_u32 v{vTW}, s48, v{t+1}
    v_lshlrev_b32 v{vTW}, 8, v{vTW}
    v_and_b32 v{t+2}, 7, v{t+1}
    v_lshl_add_u32 v{vTW}, v{t+2}, 5, v{vTW}
    v_lshrrev_b32 v{t+2}, 2, v{t+1}
    v_xor_b32 v{t+2}, v{t+2}, v{t}
    v_lshl_add_u32 v{vTW}, v{t+2}, 3, v{vTW}
    v_lshrrev_b32 v{t+2}, 2, v{vL}
    v_lshlrev_b32 v{vTR}, 8, v{t+2}
    v_and_b32 v{t+2}, 7, v{t+2}
    v_lshl_add_u32 v{vTR}, v{t+2}, 5, v{vTR}
    v_and_b32 v{t+2}, 3, v{vL}
    v_xor_b32 v{t+2}, v{t+2}, v{t}
    v_lshl_add_u32 v{vTR}, v{t+2}, 3, v{vTR}
    v_mov_b32 v{vONE}, 1
    v_mov_b32 v{vSEL}, {OOB}
    v_cmp_eq_u32 vcc, 0, v{vL}
    v_cndmask_b32 v{vSEL}, v{vSEL}, 0, vcc
    s_mul_i32 s59, s39, 294912
    s_add_u32 s59, s59, {A2_OFF}
    """)

def h_epilogue(a, HP, sc):
    BI = TT
    for i in range(7):
        nb = 6 + i
        a(f"v_lshlrev_b32 v{BI}, 16, v{B1+2*i}")
        a(f"v_and_b32 v{BI+1}, s57, v{B1+2*i}")
        a(f"v_lshlrev_b32 v{BI+2}, 16, v{B1+2*i+1}")
        a(f"v_and_b32 v{BI+3}, s57, v{B1+2*i+1}")
        rs = [(acc(mb, nb) + 2 * hh, BI + 2 * hh, HP + mb * 16 + i * 2 + hh) for mb in range(2) for hh in range(2)]
        for rr, bi, d in rs:
            a(f"v_cvt_pk_bf16_f32 v{rr}, 0, v{rr}")
            a(f"v_cvt_pk_bf16_f32 v{rr+1}, 0, v{rr+1}")
        for rr, bi, d in rs: a(f"v_pk_add_f32 v[{rr}:{rr+1}], v[{rr}:{rr+1}], v[{bi}:{bi+1}]")
        for rr, bi, d in rs: a(f"v_cvt_pk_bf16_f32 v{d}, v{rr}, v{rr+1}")
        for rr, bi, d in rs: a(f"v_pk_max_i16 v{d}, v{d}, 0")
        for rr, bi, d in rs:
            a(f"v_lshlrev_b32 v{rr}, 16, v{d}")
            a(f"v_and_b32 v{rr+1}, s57, v{d}")
        for rr, bi, d in rs: a(f"v_pk_mul_f32 v[{rr}:{rr+1}], v[{rr}:{rr+1}], v[{rr}:{rr+1}]")
        for rr, bi, d in rs: a(f"v_cvt_pk_bf16_f32 v{d}, v{rr}, v{rr+1}")
        if i in (1, 3, 5):
            c = i // 2
            if c == 0:
                a(f"s_mul_i32 s48, s37, {3*2048}")
                a(f"s_add_u32 s48, s48, s59")
                a(f"s_add_u32 s48, s48, {32*2048}")
            if c == 2: a(f"s_add_u32 s48, s48, 4096")
            for mb in range(2):
                r = HP + mb * 16 + c * 4
                a(f"buffer_store_dwordx4 v[{r}:{r+3}], v{vA}, s[28:31], s48 offen offset:{(c&1)*2048+mb*1024}{sc} ;@HS")
    a(f"""
    s_lshr_b32 s48, s37, 1
    s_lshl_b32 s48, s48, 11
    s_add_u32 s48, s48, s59
    s_add_u32 s48, s48, {128*2048}
    s_and_b32 s49, s37, 1
    s_lshl_b32 s49, s49, 3
    s_add_u32 s48, s48, s49
    """)
    for mb in range(2):
        r = HP + mb * 16 + 12
        a(f"buffer_store_dwordx2 v[{r}:{r+1}], v{vA}, s[28:31], s48 offen offset:{mb*1024}{sc} ;@HS")

def t_write(a):
    t = TT
    for Q in range(6):
        a(f"v_xor_b32 v{t+(Q&1)}, {Q<<5}, v{vTW}")
        for mb in range(2):
            src = PH + (mb * 2 + (Q >> 1)) * 4 + (Q & 1) * 2 if Q < 4 else acc(mb, 4) + (Q - 4) * 2
            a(f"ds_write_b64 v{t+(Q&1)}, v[{src}:{src+1}] offset:{mb*4096} ;@TW")
    a(f"""
    s_and_b32 s48, s36, 3
    s_lshl_b32 s48, s48, 5
    v_xor_b32 v{t+2}, s48, v{vTR}
    s_lshr_b32 s48, s36, 2
    s_add_u32 s48, s48, 4
    s_lshl_b32 s48, s48, 5
    v_xor_b32 v{t+3}, s48, v{vTR}        ; v cols Q = 4 + (w>>2)
    v_mov_b32 v{ST}, 0x3f803f80
    v_mov_b32 v{ST+1}, 0x3f803f80
    v_mov_b32 v{ST+2}, 0x3f803f80
    v_mov_b32 v{ST+3}, 0x3f803f80
    """)

def kv_stage(a):
    t = TT
    FA = E; FB_ = 192; KVT = PK; ZT = PK + 4
    def mm(k2):
        a(f"WAIT KR{k2}")
        c = '0' if k2 == 0 else f"v[{KVT}:{KVT+3}]"
        a(f"v_mfma_f32_16x16x32_bf16 v[{KVT}:{KVT+3}], v[{FA+k2*4}:{FA+k2*4+3}], v[{FB_+k2*4}:{FB_+k2*4+3}], {c}")
        c = '0' if k2 == 0 else f"v[{ZT}:{ZT+3}]"
        a(f"v_mfma_f32_16x16x32_bf16 v[{ZT}:{ZT+3}], v[{FA+k2*4}:{FA+k2*4+3}], v[{ST}:{ST+3}], {c}")
    for ks in range(8):
        for jj in range(2):
            a(f"ds_read_b64_tr_b16 v[{FA+ks*4+jj*2}:{FA+ks*4+jj*2+1}], v{t+2} offset:{ks*8192+jj*4096} ;@KR{ks}")
        for jj in range(2):
            a(f"ds_read_b64_tr_b16 v[{FB_+ks*4+jj*2}:{FB_+ks*4+jj*2+1}], v{t+3} offset:{ks*8192+jj*4096} ;@KR{ks}")
        if ks >= 3: mm(ks - 3)
    a(f"""
    s_lshl_b32 s48, s37, 3
    s_add_u32 s48, s48, s38
    s_mul_i32 s48, s48, 12288
    s_add_u32 s48, s48, {KVP_OFF}
    s_and_b32 s49, s40, 0xfff
    s_add_u32 s49, s49, s48
    s_add_u32 s49, s49, 8192               ; z tile (w&3)
    s_add_u32 s48, s48, s40                ; + w*1024
    """)
    for k2 in (5, 6, 7): mm(k2)
    a(f"""
    buffer_store_dwordx4 v[{KVT}:{KVT+3}], v{vA}, s[28:31], s48 offen sc1 ;@KS
    buffer_store_dwordx4 v[{ZT}:{ZT+3}], v{vA}, s[28:31], s49 offen sc1 ;@KS
    s_lshl_b32 s58, s37, 8
    s_lshl_b32 s48, s36, 5
    s_add_u32 s58, s58, s48
    s_add_u32 s58, s58, {FLAG_OFF}
    """)
def kv_flag(a):
    a(f"""{{
    s_lshl_b32 s48, s38, 2
    s_add_u32 s48, s48, s58
    WAIT KS
    buffer_store_dword v{vONE}, v{vSEL}, s[28:31], s48 offen sc1
    }}""")

def poll_issue(a, vf, voff, sbase, tag):
    a(f"buffer_load_dword v{vf}, v{voff}, s[28:31], s{sbase} offen sc1 ;@{tag}")
def poll_check(a, vf, voff, sbase, tag):
    ok = lab('ok'); lp = lab('sp')
    a(f"""{{
    WAIT {tag}
    v_cmp_ne_u32 vcc, 1, v{vf}
    s_mov_b32 s49, 0
    s_nop 0
    s_cmp_eq_u64 vcc, 0
    s_cbranch_scc1 {ok}
    SKIP_BEGIN
    {lp}:
    s_sleep 1
    buffer_load_dword v{vf}, v{voff}, s[28:31], s{sbase} offen sc1
    s_waitcnt vmcnt(0)
    v_cmp_ne_u32 vcc, 1, v{vf}
    s_add_u32 s49, s49, 1
    s_nop 0
    s_cmp_eq_u64 vcc, 0
    s_cbranch_scc1 {ok}
    s_cmp_lt_u32 s49, 0x40000
    s_cbranch_scc1 {lp}
    SKIP_END
    {ok}:
    }}""")

PL = E; ZL = ST
def partial_loads(a):
    a(f"""
    s_mul_i32 s48, s37, {8*12288}
    s_add_u32 s48, s48, {KVP_OFF}
    s_and_b32 s49, s40, 0xfff
    s_add_u32 s49, s49, s48
    s_add_u32 s49, s49, 8192
    s_add_u32 s48, s48, s40
    v_and_b32 v{TT}, 7, v{vL}
    v_mul_u32_u24 v{TT}, 12288, v{TT}
    v_lshrrev_b32 v{TT+1}, 4, v{vL}
    v_lshl_add_u32 v{TT}, v{TT+1}, 8, v{TT}
    buffer_load_dwordx4 v[{ZL}:{ZL+3}], v{TT}, s[28:31], s49 offen sc1 ;@PZ
    """)
    for mt in range(8):
        a(f"""{{
        buffer_load_dwordx4 v[{PL+mt*4}:{PL+mt*4+3}], v{vA}, s[28:31], s48 offen sc1 ;@PP{mt}
        s_add_u32 s48, s48, 12288
        }}""")
def partial_reduce(a, KVF, pk):
    a(f"""
    s_lshr_b32 s49, s36, 1
    s_lshl_b32 s49, s49, 10
    s_and_b32 s50, s36, 1
    s_lshl_b32 s50, s50, 3
    s_add_u32 s49, s49, s50
    s_add_u32 s49, s49, {KVF}
    v_add_u32 v{TT}, s49, v{vA}
    s_and_b32 s49, s49, {~2048 & 0xffffffff}
    v_add_u32 v{TT+1}, s49, v{vA}
    WAIT PZ
    """)
    assert KVF % 4096 == 0
    for r in (4, 2, 1):
        for k in range(4): a(f"v_add_f32 v{ZL+k}, v{ZL+k}, v{ZL+k} row_ror:{r}")
    a(f"v_cvt_pk_bf16_f32 v{ZL}, v{ZL}, v{ZL+1}")
    a(f"v_cvt_pk_bf16_f32 v{ZL+1}, v{ZL+2}, v{ZL+3}")
    a(f"ds_write_b64 v{TT+1}, v[{ZL}:{ZL+1}] offset:4096 ;@KW")
    P = PL
    for mt in range(1, 8):
        a(f"WAIT PP{mt}")
        if pk:
            a(f"v_pk_add_f32 v[{P}:{P+1}], v[{P}:{P+1}], v[{P+mt*4}:{P+mt*4+1}]")
            a(f"v_pk_add_f32 v[{P+2}:{P+3}], v[{P+2}:{P+3}], v[{P+mt*4+2}:{P+mt*4+3}]")
        else:
            for k in range(4): a(f"v_add_f32 v{P+k}, v{P+k}, v{P+mt*4+k}")
    a(f"v_cvt_pk_bf16_f32 v{P}, v{P}, v{P+1}")
    a(f"v_cvt_pk_bf16_f32 v{P+1}, v{P+2}, v{P+3}")
    a(f"ds_write_b64 v{TT}, v[{P}:{P+1}] ;@KW")
def o_stage(a, KVF, sc):
    KV = E
    O = [28, 92]
    TP = 40
    a(f"v_add_u32 v{TT}, {KVF}, v{vA}")
    for t in range(6):
        a(f"ds_read_b128 v[{KV+t*4}:{KV+t*4+3}], v{TT} offset:{t*1024} ;@KV")
    a("GAP 4")
    a("WAIT KV")
    for mb in range(2):
        for db in range(3):
            r = O[mb] + db * 4
            a(f"v_mfma_f32_16x16x32_bf16 v[{r}:{r+3}], v[{KV+db*8}:{KV+db*8+3}], v[{PH+mb*8}:{PH+mb*8+3}], 0")
    for mb in range(2):
        for db in range(3):
            r = O[mb] + db * 4
            a(f"v_mfma_f32_16x16x32_bf16 v[{r}:{r+3}], v[{KV+db*8+4}:{KV+db*8+7}], v[{PH+mb*8+4}:{PH+mb*8+7}], v[{r}:{r+3}]")
    a(f"s_lshl_b32 s50, s37, 11")
    a(f"s_add_u32 s50, s50, s59")
    a("GAP 4")
    for mb in range(2):
        dn = O[mb] + 8
        a(f"v_cvt_pk_bf16_f32 v{dn}, 0, v{dn}")
        a(f"v_add_f32 v{dn}, 0x358637bd, v{dn}")
        a(f"v_cvt_pk_bf16_f32 v{dn}, 0, v{dn}")
        a(f"v_rcp_f32 v{dn}, v{dn}")
        r = O[mb]
        for k in range(8): a(f"v_cvt_pk_bf16_f32 v{r+k}, 0, v{r+k}")
        for k in range(8): a(f"v_mul_f32 v{r+k}, v{dn}, v{r+k}")
        t = TP + mb * 4
        for k in range(4): a(f"v_cvt_pk_bf16_f32 v{t+k}, v{r+2*k}, v{r+2*k+1}")
        a(f"buffer_store_dwordx4 v[{t}:{t+3}], v{vA}, s[28:31], s50 offen offset:{mb*1024}{sc} ;@OS")

def gen_k1():
    a = S()
    pf = Prof(a, vPROF, 1)
    a("""
    s_cmp_ge_u32 s2, 256
    s_cbranch_scc1 L1_end
    """)
    pf.stamp('start')
    k1_setup(a, pf)
    pf.stamp('setup')
    k1_loop(a, pf)
    pf.stamp('loop')
    post_setup(a)
    for mb in range(2): packfrag(a, acc(mb, 2), acc(mb, 2), acc(mb, 3))
    for mb in range(2): packfrag(a, KFQ + mb * 4, acc(mb, 0), acc(mb, 1))
    for mb in range(2): packfrag(a, acc(mb, 4), acc(mb, 4), acc(mb, 5))
    a("WAIT BIAS")
    h_epilogue(a, 112, C.SC)
    pf.stamp('hepi')
    a("WAIT WP")
    feature_map(a, lambda mb: acc(mb, 2), True)
    pf.stamp('fmk')
    a("WAIT B31")
    a("s_barrier")
    t_write(a)
    a("WAIT TW")
    a("s_barrier")
    kv_stage(a)
    kv_flag(a)
    pf.stamp('kv')
    a(f"v_and_b32 v9, 7, v{vL}")
    a(f"v_lshlrev_b32 v9, 2, v9")
    feature_map(a, lambda mb: KFQ + mb * 4, True)
    poll_issue(a, 10, 9, 58, 'KF')
    pf.stamp('fmq')
    poll_check(a, 10, 9, 58, 'KF')
    pf.stamp('poll')
    partial_loads(a)
    partial_reduce(a, 65536, True)
    a("WAIT KW")
    a("s_barrier")
    pf.stamp('reduce')
    o_stage(a, 65536, C.SC)
    if C.PROF:
        pf.stamp('o')
        a("s_waitcnt vmcnt(0)")
        pf.stamp('end')
        pf.flush(28, 12, 36, 8)
    a("L1_end:")
    a("s_endpgm")
    return a, 256, 100, LDS_MAIN
C.SC = ''


ACC2, BF2, AR2, ACCA = 192, 160, 112, 36
acc2 = lambda mb, nb: ACC2 + (mb * 8 + nb) * 4
acca = lambda mb, nb: ACCA + (mb * 4 + nb) * 4
XR, B2R, XT = 68, 76, 84
vT, vTO = 14, 22
vA0, vA1 = 26, 27
vBh0, vBh1, vBo, vO, vX1, vPO = 3, 4, 9, 10, 11, 12
D2 = 6; NH = 28; NS2 = 44
RING2 = 65536

def k2_setup(a, t):
    a(f"""
    s_lshr_b32 s70, s36, 2            ; g
    s_and_b32 s71, s36, 3             ; mw
    s_and_b32 s74, s46, 1             ; kh
    s_lshr_b32 s48, s46, 1            ; xq
    s_and_b32 s72, s48, 1
    s_lshl_b32 s72, s72, 3
    s_and_b32 s49, s47, 7
    s_add_u32 s72, s72, s49           ; mt
    s_lshr_b32 s73, s48, 1
    s_lshl_b32 s73, s73, 2
    s_lshr_b32 s49, s47, 3
    s_add_u32 s73, s73, s49           ; nt2
    s_lshl_b32 s75, s74, 1
    s_add_u32 s75, s75, s70           ; q = 2kh+g
    v_lshrrev_b32 v{t}, 4, v{vL}
    s_lshl_b32 s48, s71, 3
    v_add_u32 v{t+1}, s48, v{t}
    v_lshlrev_b32 v{vBh0}, 11, v{t+1}
    v_lshlrev_b32 v{t}, 1, v{t}
    v_and_b32 v{t+1}, 15, v{vL}
    v_xor_b32 v{t}, v{t}, v{t+1}
    v_lshl_add_u32 v{vBh0}, v{t}, 4, v{vBh0}
    s_lshl_b32 s48, s73, 8
    v_add_u32 v{vBh0}, s48, v{vBh0}
    v_xor_b32 v{vBh1}, 128, v{vBh0}
    v_add_u32 v{vBh1}, 8192, v{vBh1}
    s_mov_b32 s80, s14
    s_mov_b32 s81, s15
    s_mov_b32 s82, {3584*2048}
    s_mov_b32 s83, 0x20000
    s_mul_i32 s85, s75, {(24 if C.KMAP else 28)*65536}
    s_sub_u32 s85, s85, 65536          ; pre-increment
    s_mul_i32 s87, s70, {D2*8192}
    s_add_u32 s87, s87, {RING2}
    s_lshl_b32 s86, s71, 11
    s_add_u32 s86, s86, s87
    """)
def k2_setup2(a, t):
    a(f"""
    ; A addresses
    s_lshl_b32 s48, s70, 10
    v_xor_b32 v{vA0}, s48, v{vA}
    v_xor_b32 v{vA1}, 0x400, v{vA0}
    s_lshl_b32 s88, s72, 2
    s_add_u32 s88, s88, s71
    s_mul_i32 s48, s88, 294912
    {{
    s_add_u32 s48, s48, {A2_OFF}
    s_add_u32 s76, s8, s48
    s_addc_u32 s77, s9, 0
    }}
    s_mov_b32 s78, 294912
    s_mov_b32 s79, 0x20000
    s_mul_i32 s84, s75, {(24 if C.KMAP else 28)*2048}
    s_add_u32 s84, s84, {32*2048}
    v_lshrrev_b32 v{t}, 2, v{vL}
    v_and_b32 v{t+1}, 3, v{vL}
    v_lshlrev_b32 v{t+1}, 3, v{t+1}
    v_add_u32 v{t+1}, s87, v{t+1}
    v_lshl_add_u32 v{t+2}, v{t}, 8, v{t+1}
    v_and_b32 v{t+3}, 7, v{t}
    v_lshlrev_b32 v{t+3}, 5, v{t+3}
    s_lshl_b32 s48, s74, 7
    v_xor_b32 v{t+3}, s48, v{t+3}
    """)
    for nb in range(8):
        a(f"v_xor_b32 v{vT+nb}, {nb*32}, v{t+3}")
        a(f"v_add_u32 v{vT+nb}, v{vT+nb}, v{t+2}")
    a(f"""
    v_lshl_add_u32 v{t+2}, v{t}, 7, v{t+1}
    v_bfe_u32 v{t+3}, v{vL}, 3, 2
    v_lshlrev_b32 v{t+3}, 5, v{t+3}
    """)
    for nb in range(4):
        a(f"v_xor_b32 v{vTO+nb}, {nb*32}, v{t+3}")
        a(f"v_add_u32 v{vTO+nb}, v{vTO+nb}, v{t+2}")
    a(f"""
    v_lshrrev_b32 v{t}, 3, v{vL}
    s_lshl_b32 s48, s71, 3
    v_add_u32 v{t}, s48, v{t}
    v_lshlrev_b32 v{vBo}, 11, v{t}
    v_bfe_u32 v{t}, v{vL}, 4, 2
    v_lshlrev_b32 v{t}, 1, v{t}
    v_and_b32 v{t+1}, 7, v{vL}
    v_xor_b32 v{t}, v{t}, v{t+1}
    v_lshl_add_u32 v{vBo}, v{t}, 4, v{vBo}
    s_lshl_b32 s89, s73, 8
    s_lshl_b32 s48, s74, 7
    s_add_u32 s89, s89, s48
    v_add_u32 v{vBo}, s89, v{vBo}
    v_and_b32 v{vPO}, {15 if C.KMAP else 31}, v{vL}
    v_lshlrev_b32 v{vPO}, 2, v{vPO}
    """)

def k2_loadB(u):
    sl = u % D2
    if u < NH:
        pre = f"""s_lshl_b32 s85, s75, 18
        s_add_u32 s85, s85, {95*65536}""" if (u == 24 and C.KMAP) else ""
        return [f"""{{
        {pre}
        s_add_u32 m0, s86, {sl*8192}
        s_add_u32 s85, s85, 65536
        buffer_load_dwordx4 v{vBh0}, s[80:83], s85 offen lds ;@b{u}
        }}""", f"""{{
        s_add_u32 m0, s86, {sl*8192+1024}
        s_nop 0
        buffer_load_dwordx4 v{vBh1}, s[80:83], s85 offen lds ;@b{u}
        }}"""]
    pre = ""
    if u == NH:
        pre = f"""s_mov_b32 s80, s60
        s_mov_b32 s81, s61
        s_mov_b32 s82, {1024*2048}
        s_lshl_b32 s85, s70, 20
        s_sub_u32 s85, s85, 65536
        s_lshl_b32 s86, s71, 10
        s_add_u32 s86, s86, s87"""
    return [f"""{{
        {pre}
        s_add_u32 m0, s86, {sl*8192}
        s_add_u32 s85, s85, 65536
        buffer_load_dwordx4 v{vBo}, s[80:83], s85 offen lds ;@b{u}
        }}"""]
def k2_loadA(u, sc):
    sl = u % D2; o = (u & 1) * 2048
    if sc and C.KMAP and not C.ASC and not 24 <= u < NH: sc = ''
    g0 = f"buffer_load_dwordx4 v[{AR2+sl*8}:{AR2+sl*8+3}], v{vA0}, s[76:79], s84 offen offset:{o}{sc} ;@a{u}"
    g1 = f"buffer_load_dwordx4 v[{AR2+sl*8+4}:{AR2+sl*8+7}], v{vA1}, s[76:79], s84 offen offset:{o}{sc} ;@a{u}"
    if u == NH: g0 = "s_lshl_b32 s84, s70, 15\n" + g0
    if u == 24 and C.KMAP: g0 = f"s_lshl_b32 s84, s75, 13\ns_add_u32 s84, s84, {128*2048}\n" + g0
    if u & 1: g1 += "\ns_add_u32 s84, s84, 4096"
    return [g0, g1]
def k2_reads(nb, u):
    sl = u % D2
    if u < NH: reg = vT + nb; o1 = 4096
    else: reg = vTO + nb; o1 = 2048
    return f"""ds_read_b64_tr_b16 v[{BF2+nb*4}:{BF2+nb*4+1}], v{reg} offset:{sl*8192} ;@r{u}_{nb}
    ds_read_b64_tr_b16 v[{BF2+nb*4+2}:{BF2+nb*4+3}], v{reg} offset:{sl*8192+o1} ;@r{u}_{nb}"""

def k2_loop(a, pf, nBpre, nApre, sc, K0=100):
    nb_, na_ = nBpre, nApre
    a("WAIT b0")
    a("s_barrier")
    for nb in range(8): a(k2_reads(nb, 0))
    pf.stamp('first2')
    for s in range(NS2):
        if s == NH: pf.stamp('phaseH')
        if C.FINE == 1 and s > NH: pf.stamp(f's{s-1}')
        if C.FINE == 1 and s in (4, 8, 16, 24): pf.stamp(f'h{s}')
        if C.FINE == 2 and (s in (32, 36, 40) or (0 < s < NH and s % 2 == 0)): pf.stamp(f'h{s}')
        a.hook(f"k2pre{s}")
        a(f"WAIT a{s}" + (f" b{s+1}" if s + 1 < NS2 else ""))
        a("s_barrier")
        a.hook(f"k2post{s}")
        lg = []; k = 0
        while nb_ < NS2 and nb_ <= s + D2 - 1 and k < 2: lg += k2_loadB(nb_); nb_ += 1; k += 1
        k = 0
        while na_ < NS2 and na_ <= s + D2 - 1 and k < 2: lg += k2_loadA(na_, sc); na_ += 1; k += 1
        NB = 8 if s < NH else 4
        NBn = 8 if s + 1 < NH else 4
        pos = {}
        for i, g in enumerate(lg): pos.setdefault((i * NB) // max(len(lg), NB // 2 + 1), []).append(g)
        for nb in range(NB):
            if NB == 8:
                if nb == 0: a(f"WAIT r{s}_3")
                if nb == 4: a(f"WAIT r{s}_7")
            else:
                if nb % 2 == 0: a(f"WAIT r{s}_{nb+1}")
            for mb in range(2):
                ar = AR2 + (s % D2) * 8 + mb * 4
                r = acc2(mb, nb) if s < NH else acca(mb, nb)
                c = '0' if s in (0, NH) else f"v[{r}:{r+3}]"
                a(f"v_mfma_f32_16x16x32_bf16 v[{r}:{r+3}], v[{BF2+nb*4}:{BF2+nb*4+3}], v[{ar}:{ar+3}], {c}")
                a.slot(K0 + s + (nb * 2 + mb) / (2.0 * NB))
            if s + 1 < NS2 and nb < NBn: a(k2_reads(nb, s + 1))
            for g in pos.get(nb, []): a(g)

def k2_xload(a, t):
    a(srd(32, 's62', 's63', 4 << 20))
    a(srd(52, 's64', 's65', 2048))
    a(f"""
    s_lshl_b32 s48, s88, 5
    s_lshl_b32 s49, s70, 4
    s_add_u32 s48, s48, s49
    v_and_b32 v{t}, 15, v{vL}
    v_add_u32 v{t}, s48, v{t}
    v_lshlrev_b32 v{t}, 11, v{t}
    v_add_u32 v{t}, s89, v{t}
    v_lshrrev_b32 v{t+1}, 4, v{vL}
    v_lshl_add_u32 v{vO}, v{t+1}, 4, v{t}
    v_lshl_add_u32 v{t}, v{t+1}, 3, v{t}
    v_lshlrev_b32 v{t+1}, 3, v{t+1}
    """)
    for nb in range(4):
        a(f"buffer_load_dwordx2 v[{XR+2*nb}:{XR+2*nb+1}], v{t}, s[32:35], 0 offen offset:{32*nb} ;@XL")
        a(f"buffer_load_dwordx2 v[{B2R+2*nb}:{B2R+2*nb+1}], v{t+1}, s[52:55], s89 offen offset:{32*nb} ;@XL")
    a(srd(32, 's66', 's67', 4 << 20))

def k2_exchange(a, K0=100):
    s0 = K0 + NH
    P = acc2(1, 0)
    sd = Side()
    sd(f"""
    s_lshl_b32 s48, s71, 14
    s_lshl_b32 s49, s70, 13
    s_add_u32 s48, s48, s49
    v_add_u32 v{vX1}, s48, v{vA}
    v_xor_b32 v{XT}, 0x2000, v{vX1}
    s_lshl_b32 s48, s72, 3
    s_add_u32 s48, s48, s73
    s_lshl_b32 s48, s48, 1                   ; tile*2
    s_add_u32 s49, s48, s74
    s_xor_b32 s48, s49, 1
    s_lshl_b32 s48, s48, 3
    s_add_u32 s48, s48, s36
    s_lshl_b32 s49, s49, 3
    s_add_u32 s49, s49, s36
    s_lshl_b32 s90, s48, 12
    s_add_u32 s90, s90, {XCH_OFF}
    s_lshl_b32 s91, s49, 12
    s_add_u32 s91, s91, {XCH_OFF}
    s_lshl_b32 s92, s48, 2
    s_add_u32 s92, s92, {XF_OFF}
    s_lshl_b32 s93, s49, 2
    s_add_u32 s93, s93, {XF_OFF}
    v_mov_b32 v{XT+2}, 0
    """)
    a.place(sd, s0 - 3, s0 - 1)
    def l1w(nbs, k0, k1, tag):
        sd = Side()
        for nb in nbs: sd(f"ds_write_b128 v{XT}, v[{acc2(1,nb)}:{acc2(1,nb)+3}] offset:{nb*1024} ;@{tag}")
        a.place(sd, k0, k1)
    def l1r(nbs, k0, k1, store):
        sd = Side()
        for nb in nbs: sd(f"ds_read_b128 v[{P+nb*4}:{P+nb*4+3}], v{vX1} offset:{nb*1024} ;@XRD{nb}")
        sd("GAP 4")
        for nb in nbs:
            sd(f"WAIT XRD{nb}")
            for k in range(4): sd(f"v_add_f32 v{acc2(0,nb)+k}, v{acc2(0,nb)+k}, v{P+nb*4+k}")
            if store:
                sd(f"buffer_store_dwordx4 v[{acc2(0,nb)}:{acc2(0,nb)+3}], v{vA}, s[28:31], s90 offen offset:{(nb-4)*1024} sc1 ;@XS")
        a.place(sd, k0, k1)
    l1w([4, 5, 6, 7], s0 + 0.2, s0 + 0.8, 'XW1')
    a.at_hook(f"k2pre{NH+1}", "WAIT XW1")
    l1r([4, 5, 6, 7], s0 + 1, s0 + 2, True)
    l1w([0, 1, 2, 3], s0 + 2, s0 + 4, 'XW2')
    a.at_hook(f"k2pre{NH+5}", "WAIT XW2")
    l1r([0, 1, 2, 3], s0 + 5, s0 + 7, False)
    sd = Side()
    sd(f"""{{
    WAIT XS
    buffer_store_dword v{vONE}, v{vSEL}, s[28:31], s92 offen sc1
    }}
    """)
    a.place(sd, s0 + C.XF, s0 + C.XF + 0.5)
    sd = Side(); poll_issue(sd, XT + 1, XT + 2, 93, 'XP'); a.place(sd, s0 + C.XP, s0 + C.XP + 0.5)
    sd = Side(); poll_check(sd, XT + 1, XT + 2, 93, 'XP')
    for nb in range(4):
        sd(f"buffer_load_dwordx4 v[{P+16+nb*4}:{P+16+nb*4+3}], v{vA}, s[28:31], s91 offen offset:{nb*1024} sc1 ;@XG")
    a.place(sd, s0 + C.XC, s0 + C.XC + 0.1)

def k2_final(a, pf):
    t = XT
    P = acc2(1, 0)
    for nb in range(4):
        a(f"ds_write_b128 v{t}, v[{acca(1,nb)}:{acca(1,nb)+3}] offset:{nb*1024} ;@FW")
    a("WAIT XG XL")
    for nb in range(4):
        r = acc2(0, nb)
        for h in range(2): a(f"v_pk_add_f32 v[{r+2*h}:{r+2*h+1}], v[{r+2*h}:{r+2*h+1}], v[{P+16+nb*4+2*h}:{P+16+nb*4+2*h+1}]")
    a("WAIT FW")
    a("s_barrier")
    Q = acca(1, 0)
    for nb in range(4):
        a(f"ds_read_b128 v[{Q+nb*4}:{Q+nb*4+3}], v{vX1} offset:{nb*1024} ;@FR{nb}")
    def unpack(dst, src):
        a(f"v_lshlrev_b32 v{dst}, 16, v{src}")
        a(f"v_and_b32 v{dst+1}, s57, v{src}")
        a(f"v_lshlrev_b32 v{dst+2}, 16, v{src+1}")
        a(f"v_and_b32 v{dst+3}, s57, v{src+1}")
    def add4(dst, x, y):
        a(f"v_pk_add_f32 v[{dst}:{dst+1}], v[{x}:{x+1}], v[{y}:{y+1}]")
        a(f"v_pk_add_f32 v[{dst+2}:{dst+3}], v[{x+2}:{x+3}], v[{y+2}:{y+3}]")
    def rnd(r):
        for k in range(4): a(f"v_cvt_pk_bf16_f32 v{r+k}, 0, v{r+k}")
    for nb in range(4):
        r = acc2(0, nb); u = P + nb * 4
        rnd(r); unpack(u, B2R + 2 * nb); add4(r, r, u); rnd(r)
        unpack(u, XR + 2 * nb)
    R = BF2
    for nb in range(4):
        r = acca(0, nb); u = P + nb * 4
        a(f"WAIT FR{nb}")
        add4(r, r, Q + nb * 4); rnd(r); add4(r, r, u); rnd(r); add4(r, r, acc2(0, nb))
        a(f"v_cvt_pk_bf16_f32 v{R+2*nb}, v{r}, v{r+1}")
        a(f"v_cvt_pk_bf16_f32 v{R+2*nb+1}, v{r+2}, v{r+3}")
        if nb & 1:
            p = nb // 2; r = R + 4 * p
            a(f"v_permlane32_swap_b32 v{r}, v{r+2}")
            a(f"v_permlane32_swap_b32 v{r+1}, v{r+3}")
            a(f"v_permlane16_swap_b32 v{r}, v{r+2}")
            a(f"v_permlane16_swap_b32 v{r+1}, v{r+3}")
            a(f"buffer_store_dwordx4 v[{r}:{r+3}], v{vO}, s[32:35], 0 offen offset:{64*p}")

def gen_k2():
    a = S()
    pf = Prof(a, vPROF, 2)
    a("""
    s_cmp_ge_u32 s2, 256
    s_cbranch_scc1 L2_end
    """)
    pf.stamp('start')
    a(f"""
    s_load_dwordx2 s[8:9], s[0:1], 88      ; ws
    s_load_dwordx2 s[14:15], s[0:1], 56    ; w2
    s_load_dwordx2 s[60:61], s[0:1], 24    ; wo
    s_load_dwordx2 s[62:63], s[0:1], 0     ; x
    s_load_dwordx2 s[64:65], s[0:1], 64    ; b2
    s_load_dwordx2 s[66:67], s[0:1], 72    ; out
    v_lshrrev_b32 v36, 6, v0
    v_and_b32 v{vL}, 63, v0
    v_readfirstlane_b32 s36, v36           ; wave
    s_and_b32 s46, s2, 7                   ; x
    s_lshr_b32 s47, s2, 3                  ; j
    v_lshlrev_b32 v{vA}, 4, v{vL}
    s_mov_b32 s57, 0xffff0000
    v_mov_b32 v{vONE}, 1
    v_mov_b32 v{vSEL}, {OOB}
    v_cmp_eq_u32 vcc, 0, v{vL}
    v_cndmask_b32 v{vSEL}, v{vSEL}, 0, vcc
    s_waitcnt lgkmcnt(0)
    """)
    a(srd(28, 's8', 's9', WS_RANGE))
    k2_setup(a, 36); k2_setup2(a, 36)
    pf.stamp('setup')
    for u in range(3):
        for g in k2_loadB(u) + k2_loadA(u, ''): a(g)
    pf.stamp('issued')
    k2_loop(a, pf, 3, 3, '')
    sd = Side(); k2_xload(sd, XT + 4); a.place(sd, 100 + 14, 100 + 17)
    k2_exchange(a)
    pf.stamp('phaseO')
    k2_final(a, pf)
    if C.PROF:
        pf.stamp('final')
        a("s_waitcnt vmcnt(0)")
        pf.stamp('end')
        pf.flush(28, 12, 36, 8)
    a("L2_end:")
    a("s_endpgm")
    return a, 256, 100, LDS_MAIN
C.XF = 6; C.XP = 9; C.XC = 11
C.OLDK2 = 0
C.FINE = 0
C.FINE1 = 0
C.REP = 0


def gen_fused():
    a = S()
    pf = Prof(a, vPROF, 1)
    a("""
    s_cmp_ge_u32 s2, 256
    s_cbranch_scc1 L1_end
    """)
    pf.stamp('start')
    k1_setup(a, pf)
    pf.stamp('setup')
    NPB = 5
    extra = {}
    for u in range(NPB):
        for i, g in enumerate(k2_loadB(u)): extra.setdefault(28 + (2 * u + i) * 4 // (2 * NPB), []).append(g)
    k1_loop(a, pf, extra)
    sd = Side(); k2_setup(sd, 11); a.place(sd, 26.5, 28)
    pf.stamp('loop')
    post_setup(a)
    a("WAIT BIAS")
    h_epilogue(a, 112, ' sc1')
    for mb in range(2): packfrag(a, acc(mb, 2), acc(mb, 2), acc(mb, 3))
    for mb in range(2): packfrag(a, KFQ + mb * 4, acc(mb, 0), acc(mb, 1))
    for mb in range(2): packfrag(a, acc(mb, 4), acc(mb, 4), acc(mb, 5))
    pf.stamp('hepi')
    a("WAIT WP")
    sd = Side(); feature_map(sd, lambda mb: acc(mb, 2), True)
    cut = int(len(sd.at) * C.HFPOS / 100)
    fl = atoms(f"""
    s_lshl_b32 s48, s39, 7
    s_lshl_b32 s49, s37, 2
    s_add_u32 s48, s48, s49
    s_add_u32 s94, s48, {OF_OFF}
    s_add_u32 s48, s48, {HF_OFF}
    WAIT HS
    buffer_store_dword v{vONE}, v{vSEL}, s[28:31], s48 offen sc1
    """)
    sd.at[cut:cut] = fl
    a.emit(sd)
    pf.stamp('fmk')
    a("s_barrier")
    t_write(a)
    k2_setup2(a, E)
    a(f"""
    s_lshl_b32 s95, s88, 7
    s_add_u32 s95, s95, {HF_OFF}
    """)
    vHP = vPO
    if C.KMAP:
        vHP = TT
        a(f"""
        s_lshl_b32 s48, s75, 5
        v_and_b32 v{TT}, 28, v{vPO}
        v_add_u32 v{TT}, s48, v{TT}
        s_lshl_b32 s48, s70, 6
        v_add_u32 v{vPO}, s48, v{vPO}
        """)
    a("WAIT TW")
    a("s_barrier")
    poll_issue(a, 10, vHP, 95, 'HF')
    kv_stage(a)
    pf.stamp('kv')
    poll_check(a, 10, vHP, 95, 'HF')
    pf.stamp('hpoll')
    NPA = C.NPA
    for u in range(NPA):
        for g in k2_loadA(u, ' sc1'): a(g)
    a(f"s_add_u32 s95, s95, {OF_OFF - HF_OFF}")
    a(f"v_and_b32 v7, 7, v{vL}")
    a(f"v_lshlrev_b32 v7, 2, v7")
    sd = Side(); feature_map(sd, lambda mb: KFQ + mb * 4, not C.FMQIN)
    if not C.FMQIN:
        cut = len(sd.at) // 2
        s2_ = Side(); kv_flag(s2_); sd.at[cut:cut] = s2_.at
        a.emit(sd)
    else:
        kv_flag(a)
    pf.stamp('fmq')
    k2_loop(a, pf, NPB, NPA, ' sc1')
    K0 = 100; t0 = K0
    if C.FMQIN:
        a.place(sd, K0, K0 + C.FMQIN); t0 = K0 + C.FMQIN - 2
    sd = Side(); poll_issue(sd, 8, 7, 58, 'KF'); a.place(sd, t0 + 0, t0 + 0.5)
    sd = Side(); poll_check(sd, 8, 7, 58, 'KF'); a.place(sd, t0 + 2, t0 + 2.1)
    sd = Side(); partial_loads(sd); a.place(sd, t0 + 2.1, t0 + 3)
    sd = Side(); partial_reduce(sd, 0, False); a.place(sd, t0 + 5, t0 + 7)
    a.at_hook(f"k2pre{t0-K0+7}", "WAIT KW")
    sd = Side(); o_stage(sd, 0, ' sc1'); a.place(sd, t0 + 7, t0 + 10)
    sd = Side()
    sd(f"""{{
    WAIT OS
    buffer_store_dword v{vONE}, v{vSEL}, s[28:31], s94 offen sc1
    }}""")
    a.place(sd, t0 + 13, t0 + 13.5)
    sd = Side(); k2_xload(sd, XT + 4); a.place(sd, t0 + 11, t0 + 13)
    so = NH - D2 + 1
    sd = Side(); poll_issue(sd, 8, vPO, 95, 'OF'); a.place(sd, K0 + so - 3, K0 + so - 2.5)
    sd = Side(); poll_check(sd, 8, vPO, 95, 'OF'); a.place(sd, K0 + so - 0.2, K0 + so)
    assert t0 + 13.5 < K0 + so - 3
    k2_exchange(a)
    pf.stamp('phaseO')
    k2_final(a, pf)
    if C.PROF:
        pf.stamp('final')
        a("s_waitcnt vmcnt(0)")
        pf.stamp('end')
        pf.flush(28, 12, 36, 8)
    a("L1_end:")
    a("s_endpgm")
    return a, 256, 100, LDS_MAIN
C.FUSED = 1; C.HFPOS = 70; C.NPA = 4; C.FMQIN = 4

HEADER = """; parallel_sum( hedgehog linear attention , squared-relu MLP ) on layernorm(x), + residual
; generated by work2/gen2.py (own generator)."""

def build(path):
    sys.path.insert(0, 'work')
    import gen as old
    ks = []
    k0, v0, s0 = gen_k0(); ks.append(("ln_kernel", finish(k0)[0], v0, s0, 256, 0))
    if C.FUSED:
        k1, v1, s1, l1 = gen_fused(); b, rep = finish(k1); ks.append(("g1_kernel", b, v1, s1, 512, l1))
        if C.REP: print('\n'.join(rep))
    else:
        k1, v1, s1, l1 = gen_k1(); b, rep = finish(k1); ks.append(("g1_kernel", b, v1, s1, 512, l1))
        if C.OLDK2:
            k2, v2, s2, l2 = old.gen_k2(8)
            k2 = [b.replace(' NEG', ' neg_lo:[0,1] neg_hi:[0,1]') for b in fix_hazards(k2)]
        else:
            k2, v2, s2, l2 = gen_k2(); k2 = finish(k2)[0]
        ks.append(("g2_kernel", k2, v2, s2, 512, l2))
    t = [HEADER]
    for n, b, v, s, thr, l in ks: t.append(f"; @launch kernel={n} grid=(256,1,1) block=({thr},1,1) lds={l}")
    t += ['.amdgcn_target "amdgcn-amd-amdhsa--gfx950"', '.text']
    for n, b, v, s, thr, l in ks: t += kernel_text(n, b, 0, 0)
    t += ['.section .rodata,"a"']
    for n, b, v, s, thr, l in ks: t += kd_text(n, v, s)
    open(path, 'w').write('\n'.join(t) + '\n')
    if C.PROF:
        import json; json.dump(PROFNAMES, open(path + '.prof.json', 'w'))

if __name__ == "__main__":
    out = None
    for x in sys.argv[1:]:
        if x.startswith("--"):
            k, _, v = x[2:].partition("=")
            if k == 'SC': v = ' ' + v if v else ''
            elif v == '': v = True
            else: v = int(v)
            setattr(C, k, v)
        else: out = x
    build(out)
```
